```python
import torch

def _softmax(x, axis=-1):
    return torch.softmax(x, dim=axis)
def _gelu(x):
    return torch.nn.functional.gelu(x, approximate="tanh")
def _silu(x):
    return torch.nn.functional.silu(x)
def _sigmoid(x):
    return torch.sigmoid(x)
def _layernorm(x, axis=-1, eps=1e-5):
    m = x.mean(dim=axis, keepdim=True)
    v = x.var(dim=axis, keepdim=True, unbiased=False)
    return (x - m) / torch.sqrt(v + eps)
def _scatter_add(tgt, idx, src, axis=0):
    return tgt.clone().index_add_(axis, idx, src)
def _segment_sum(src, seg, n):
    out = torch.zeros((n,) + src.shape[1:], dtype=src.dtype)
    return out.index_add_(0, seg, src)
def _pad(x, pw):
    flat = tuple(v for pair in reversed(pw) for v in pair)
    return torch.nn.functional.pad(x, flat)

kernel_name = 'interleave_layers__ssm_conv_h3__geglu_ffn__prompt'

def setup_inputs():

    _w = (lambda a: (lambda t: t.to(torch.bfloat16) if t.is_floating_point() else t)(torch.as_tensor(a)))
    def _A_setup():
        B, S, D = 1, 2048, 640
        ks = 4
        return {
            "q": _w((lambda *s: torch.randn(*s, dtype=torch.bfloat16) * 0.05)(B, S, D)),
            "k": _w((lambda *s: torch.randn(*s, dtype=torch.bfloat16) * 1.6)(B, S, D)),
            "v": _w((lambda *s: torch.randn(*s, dtype=torch.bfloat16) * 1.6)(B, S, D)),
            "shift_k": _w((lambda *s: torch.randn(*s, dtype=torch.bfloat16) * 1.6)(D, ks) * 0.5),
            "ssm_k": _w((lambda *s: torch.randn(*s, dtype=torch.bfloat16) * 1.6)(D, S) * (1.0 / S ** 0.5)),
            "ssm_D": _w((lambda *s: torch.randn(*s, dtype=torch.bfloat16) * 1.6)(D)),
        }
    _A_in = _A_setup()

    def _B_setup():
        B, S, D, F = 1, 2048, 640, 1728
        return {
            "x": _w((lambda *s: torch.randn(*s, dtype=torch.bfloat16) * 0.05)(B, S, D)),
            "w_gate": _w((lambda *s: torch.randn(*s, dtype=torch.bfloat16) * 0.2)(D, F)),
            "w_up": _w((lambda *s: torch.randn(*s, dtype=torch.bfloat16) * 0.2)(D, F)),
            "w_down": _w((lambda *s: torch.randn(*s, dtype=torch.bfloat16) * 0.2)(F, D)),
        }
    _B_in = _B_setup()

    return {
        "A_q": _A_in["q"],
        "A_k": _A_in["k"],
        "A_v": _A_in["v"],
        "A_shift_k": _A_in["shift_k"],
        "A_ssm_k": _A_in["ssm_k"],
        "A_ssm_D": _A_in["ssm_D"],
        "B_x": _B_in["x"],
        "B_w_gate": _B_in["w_gate"],
        "B_w_up": _B_in["w_up"],
        "B_w_down": _B_in["w_down"],
    }

def reference(A_q, A_k, A_v, A_shift_k, A_ssm_k, A_ssm_D, B_x, B_w_gate, B_w_up, B_w_down):
    def _A_ref(q, k, v, shift_k, ssm_k, ssm_D):
        B, S, D = q.shape
        ks = shift_k.shape[-1]
        k_pad = _pad(k, ((0, 0), (ks - 1, 0), (0, 0)))
        k_shift = torch.zeros_like(k)
        for t in range(ks):
            k_shift = k_shift + k_pad[:, t:t + S, :] * shift_k[:, ks - 1 - t][None, None, :]
        kv = k_shift * v
        L = 2 * S
        kv_pad = _pad(kv, ((0, 0), (0, S), (0, 0)))
        kf_pad = _pad(ssm_k, ((0, 0), (0, S)))
        kv_f = (lambda x, axes=(-2,-1): torch.fft.rfft2(x.float(), dim=axes))(kv_pad[:, None, :, :], axes=(1, 2))
        kf_f = (lambda x, axes=(-2,-1): torch.fft.rfft2(x.float(), dim=axes))(kf_pad[:, None, :], axes=(1, 2))
        kf_f = (lambda x, *d: x.permute(*d))(kf_f, 1, 2, 0)
        y_f = kv_f * kf_f[None, :, :, :]
        y = (lambda x, s, axes=(-2,-1): torch.fft.irfft2(x, s=s, dim=axes).to(torch.bfloat16))(y_f, (1, L), axes=(1, 2))[:, 0, :S, :]
        y = y + kv * ssm_D[None, None, :]
        return q * y

    def _B_ref(x, w_gate, w_up, w_down):
        return (_gelu(x @ w_gate) * (x @ w_up)) @ w_down

    x = A_q
    x = x + _A_ref(_layernorm(x, axis=-1), A_k, A_v, A_shift_k, A_ssm_k, A_ssm_D)
    x = x + _B_ref(_layernorm(x, axis=-1), B_w_gate, B_w_up, B_w_down)
    x = x + _A_ref(_layernorm(x, axis=-1), A_k, A_v, A_shift_k, A_ssm_k, A_ssm_D)
    x = x + _B_ref(_layernorm(x, axis=-1), B_w_gate, B_w_up, B_w_down)
    return x
```

```python
import re

REG_RE = re.compile(r'\b([vas])\[(\d+):(\d+)\]|\b([vas])(\d+)\b|\b(vcc|exec|m0)(?:_lo|_hi)?\b')
TRANS = ('v_exp_f32', 'v_log_f32', 'v_rcp_f32', 'v_rsq_f32', 'v_sqrt_f32', 'v_sin_f32', 'v_cos_f32')
DPPW = ('quad_perm', 'row_shr', 'row_shl', 'row_ror', 'row_bcast', 'row_mirror', 'row_half_mirror', 'row_newbcast', 'wave_')


def regs_of(tok):
    out = []
    for m in REG_RE.finditer(tok):
        if m.group(1):
            out += [m.group(1) + str(i) for i in range(int(m.group(2)), int(m.group(3)) + 1)]
        elif m.group(4):
            out.append(m.group(4) + m.group(5))
        else:
            out.append(m.group(6))
    return out


def split_ops(s):
    ops, depth, cur = [], 0, ''
    for ch in s:
        if ch == '[':
            depth += 1
        if ch == ']':
            depth -= 1
        if ch == ',' and depth == 0:
            ops.append(cur.strip())
            cur = ''
        else:
            cur += ch
    if cur.strip():
        ops.append(cur.strip())
    return ops


class Ins:
    __slots__ = ('text', 'op', 'kind', 'rd', 'wr', 'srcc', 'tag', 'cost', 'meta')

    def __init__(self, text, tag=None, meta=None):
        self.text = text
        self.tag = tag
        self.meta = meta
        self.srcc = ()
        t = text.split(';')[0].strip()
        if t.endswith(':'):
            self.op, self.kind, self.rd, self.wr, self.cost = t, 'label', (), (), 0
            return
        if t.startswith('.') or t == '':
            self.op, self.kind, self.rd, self.wr, self.cost = t, 'dir', (), (), 0
            return
        sp = t.split(None, 1)
        op = sp[0]
        rest = sp[1] if len(sp) > 1 else ''
        ops = split_ops(rest)
        R = [regs_of(o) for o in ops]
        flat = lambda L: [r for x in L for r in x]
        self.op = op
        self.cost = 1
        k = None
        rd, wr = [], []
        if op.startswith('v_mfma'):
            k = 'mfma8' if '32x32' in op else 'mfma4'
            wr, rd = R[0], flat(R[1:])
            self.srcc = tuple(R[3])
        elif op.startswith('buffer_load') or op.startswith('global_load'):
            if re.search(r'\blds\b', rest) or 'load_lds' in op:
                k, rd = 'dma', flat(R) + ['m0']
            else:
                k, wr, rd = 'vld', R[0], flat(R[1:])
        elif op.startswith('buffer_store') or op.startswith('global_store'):
            k, rd = 'vst', flat(R)
        elif op.startswith('buffer_atomic') or op.startswith('global_atomic'):
            k, rd = 'vst', flat(R)
            assert not re.search(r'\bsc0\b', rest), "returning atomics unsupported"
        elif op.startswith('ds_read') or op.startswith('ds_bpermute') or op.startswith('ds_swizzle'):
            k, wr, rd = 'dsr', R[0], flat(R[1:])
        elif op.startswith('ds_'):
            k, rd = 'dsw', flat(R)
        elif op.startswith('s_load') or op == 's_memtime' or op == 's_memrealtime':
            k, wr, rd = 'smem', R[0], flat(R[1:])
        elif op == 's_waitcnt':
            k = 'wait'
        elif op == 's_nop':
            k = 'nop'
            self.cost = int(rest) + 1
        elif op in ('s_barrier', 's_setprio', 's_sleep', 's_endpgm'):
            k = 'sctl'
        elif op.startswith('s_cbranch') or op == 's_branch':
            k = 'branch'
            if 'vcc' in op:
                rd = ['vcc']
            if 'exec' in op:
                rd = ['exec']
        elif op.startswith('s_cmp') or op.startswith('s_bitcmp'):
            k, rd = 'salu', flat(R)
        elif op.startswith('s_'):
            k, wr, rd = 'salu', R[0], flat(R[1:])
            if 'saveexec' in op:
                wr = wr + ['exec']
                rd = rd + ['exec']
            if op.startswith('s_cmov') or op.startswith('s_addk') or op.startswith('s_mulk'):
                rd = rd + R[0]
        elif op.startswith('v_'):
            k = 'valu'
            if op.startswith('v_cmpx'):
                wr, rd = ['exec'] + R[0], flat(R[1:])
            elif op.startswith('v_permlane') and 'swap' in op:
                k = 'perm'
                wr = rd = flat(R)
            elif op.startswith('v_swap'):
                wr = rd = flat(R)
            elif op == 'v_nop':
                pass
            else:
                wr, rd = R[0], flat(R[1:])
                if op.startswith(('v_fmac', 'v_mac', 'v_dot2c', 'v_pk_fmac', 'v_writelane')):
                    rd = rd + R[0]
                if op.startswith(('v_add_co', 'v_sub_co', 'v_addc_co', 'v_subb_co')):
                    wr = R[0] + R[1]
                    rd = flat(R[2:])
                if op.startswith(TRANS):
                    k = 'trans'
                    self.cost = 2
                if op.startswith(('v_readfirstlane', 'v_readlane')):
                    k = 'rdlane'
                if any(w in rest for w in DPPW):
                    k = 'dpp'
                    rd = rd + R[0]
        else:
            raise ValueError("unknown op " + text)
        self.kind, self.rd, self.wr = k, tuple(rd), tuple(wr)


VALU_KINDS = ('valu', 'trans', 'dpp', 'perm', 'rdlane')


class Stream:
    def __init__(self):
        self.L = []

    def __call__(self, text, tag=None):
        for line in text.strip().split('\n'):
            line = line.strip()
            if line and not line.startswith(';'):
                self.L.append(Ins(line, tag))
        return self

    def pseudo(self, what, arg=None):
        i = Ins('')
        i.kind = 'pseudo'
        i.meta = (what, arg)
        self.L.append(i)

    def wait_tag(self, tag):
        self.pseudo('wait_tag', tag)

    def wait_ds(self):
        self.pseudo('wait_ds')

    def drain(self):
        self.pseudo('drain')

    def push(self):
        self.pseudo('push')

    def pop(self):
        self.pseudo('pop')

    def reset(self):
        self.pseudo('reset')

    def extend(self, other):
        self.L += other.L
        return self


def interleave(main, side, slots, start=0, stop=None):
    out = Stream()
    S = list(side.L)
    si = 0
    M = main.L
    nm = 0
    i = 0
    while i < len(M):
        ins = M[i]
        out.L.append(ins)
        i += 1
        if ins.kind in ('mfma4', 'mfma8'):
            used = 0
            j = i
            while j < len(M) and M[j].kind not in ('mfma4', 'mfma8'):
                if M[j].kind not in ('pseudo', 'label', 'dir'):
                    used += M[j].cost
                j += 1
            out.L += M[i:j]
            i = j
            if nm >= start and (stop is None or nm < stop):
                while si < len(S):
                    c = S[si].cost if S[si].kind not in ('pseudo', 'label', 'dir') else 0
                    if used + c > slots:
                        break
                    out.L.append(S[si])
                    used += c
                    si += 1
            nm += 1
    out.L += S[si:]
    return out


def insert_waits(L):
    out = []
    vm, lg = [], []
    stack = []

    def emit_wait(v=None, l=None):
        parts = []
        if v is not None:
            parts.append(f'vmcnt({min(v, 63)})')
            del vm[:len(vm) - v]
        if l is not None:
            parts.append(f'lgkmcnt({min(l, 15)})')
            del lg[:len(lg) - l]
        out.append(Ins('s_waitcnt ' + ' '.join(parts)))

    for ins in L:
        if ins.kind == 'pseudo':
            what, arg = ins.meta
            if what == 'wait_tag':
                idx = [i for i, e in enumerate(vm) if e[1] == arg]
                if idx:
                    emit_wait(v=len(vm) - 1 - idx[-1])
            elif what == 'wait_ds':
                if lg:
                    emit_wait(l=0)
            elif what == 'drain':
                if vm or lg:
                    emit_wait(v=0 if vm else None, l=0 if lg else None)
            elif what == 'push':
                stack.append((list(vm), list(lg)))
            elif what == 'pop':
                ovm, olg = stack.pop()
                nv = [e for e in vm if not any(e is o for o in ovm)]
                nl = [e for e in lg if not any(e is o for o in olg)]
                wv = any(e[0] or e[1] for e in nv)
                wl = len(nl) > 0
                if wv or wl:
                    emit_wait(v=0 if wv else None, l=0 if wl else None)
                vm[:] = ovm
                lg[:] = olg
            elif what == 'reset':
                vm.clear()
                lg.clear()
            continue
        if ins.kind == 'wait':
            m = re.search(r'vmcnt\((\d+)\)', ins.text)
            if m:
                n = int(m.group(1))
                if n < len(vm):
                    del vm[:len(vm) - n]
            m = re.search(r'lgkmcnt\((\d+)\)', ins.text)
            if m:
                n = int(m.group(1))
                if n == 0 or not any(e[2] for e in lg):
                    if n < len(lg):
                        del lg[:len(lg) - n]
            out.append(ins)
            continue
        touch = set(ins.rd) | set(ins.wr)
        v = l = None
        for i in range(len(vm) - 1, -1, -1):
            if vm[i][0] & touch:
                v = len(vm) - 1 - i
                break
        for i in range(len(lg) - 1, -1, -1):
            if lg[i][0] & touch:
                l = 0 if any(e[2] for e in lg) else len(lg) - 1 - i
                break
        if v is not None or l is not None:
            emit_wait(v, l)
        out.append(ins)
        if ins.kind in ('vld', 'vst', 'dma'):
            vm.append((set(ins.wr), ins.tag, False))
        elif ins.kind in ('dsr', 'dsw'):
            lg.append((set(ins.wr), ins.tag, False))
        elif ins.kind == 'smem':
            lg.append((set(ins.wr), ins.tag, True))
    return out


def need_states(p, c):
    n = 0
    pw, pr = set(p.wr), set(p.rd)
    cr, cw = set(c.rd), set(c.wr)
    isv = lambda s: {r for r in s if r[0] in 'va' and r[1:].isdigit()}
    iss = lambda s: {r for r in s if (r[0] == 's' and r[1:].isdigit()) or r == 'vcc'}
    if p.kind in VALU_KINDS:
        vw = isv(pw)
        sw = iss(pw)
        if c.kind in ('mfma4', 'mfma8') and vw & cr:
            n = max(n, 2)
        if c.kind in ('dpp', 'perm') and vw & cr:
            n = max(n, 2)
        if c.kind == 'rdlane' and vw & cr:
            n = max(n, 1)
        if p.kind == 'trans' and c.kind in VALU_KINDS and vw & cr:
            n = max(n, 1)
        if p.kind == 'trans' and c.kind in ('vst', 'dsw', 'vld', 'dsr', 'dma') and vw & cr:
            n = max(n, 1)
        if sw & cr:
            if c.kind in ('vld', 'vst', 'dma'):
                n = max(n, 5)
            elif c.kind in VALU_KINDS:
                n = max(n, 4 if c.op.startswith(('v_readlane', 'v_writelane')) else 2)
            elif c.kind in ('salu', 'branch', 'smem'):
                n = max(n, 1)
        if 'exec' in pw:
            if c.kind == 'dpp':
                n = max(n, 5)
            elif c.kind in ('perm', 'rdlane', 'mfma4', 'mfma8'):
                n = max(n, 4)
            elif c.kind == 'branch':
                n = max(n, 5)
        if ('sdwa' in p.text or 'op_sel' in p.text) and c.kind in VALU_KINDS and vw & (cr | cw):
            n = max(n, 1)
    if p.kind in ('mfma4', 'mfma8'):
        e = p.kind == 'mfma8'
        if c.kind in ('mfma4', 'mfma8'):
            cs = set(c.srcc)
            ab = cr - cs if not (cs <= cr and False) else cr
            abregs = set(c.rd[:len(c.rd) - len(c.srcc)])
            if pw & abregs:
                n = max(n, 12 if e else 8)
            if pw & cs:
                if not (tuple(p.wr) == tuple(c.srcc) and p.kind == c.kind):
                    n = max(n, 10 if e else 6)
            elif pw & cw:
                n = max(n, 12 if e else 8)
        else:
            if pw & (cr | cw):
                n = max(n, 12 if e else 8)
            if c.kind in VALU_KINDS and set(p.srcc) & cw:
                n = max(n, 7 if e else 3)
    if p.kind == 'vst' and ('x4' in p.op or 'x3' in p.op) and isv(pr) & cw:
        n = max(n, 2 if c.kind in VALU_KINDS else 1)
    if p.kind == 'salu' and 'm0' in pw and c.kind == 'dma':
        n = max(n, 1)
    return n


def insert_nops(L):
    out = []
    for ins in L:
        if ins.kind in ('label', 'dir'):
            out.append(ins)
            continue
        need = 0
        dist = 0
        for p in reversed(out):
            if p.kind in ('label', 'dir'):
                continue
            if dist >= 12:
                break
            r = need_states(p, ins) - dist
            if r > need:
                need = r
            dist += p.cost if p.kind == 'nop' else 1
        while need > 0:
            k = min(need, 8)
            out.append(Ins(f's_nop {k - 1}'))
            need -= k
        out.append(ins)
    return out


def finalize(stream):
    L = insert_waits(stream.L)
    L = insert_nops(L)
    return '\n'.join(('' if i.kind == 'label' else '  ') + i.text for i in L) + '\n', L
```

```python
from asmlib import Stream, interleave, finalize

KN = "interleave_layers__ssm_conv_h3__geglu_ffn__prompt_kernel"

CNT = 0
L_U, L_QZ, L_WD, L_W1, L_X1, L_H, L_X3, L_END = 0, 32, 64, 72, 80, 128, 256, 320
TS = 0x000E0000
U_ = 0x00100000
QZ = 0x00400000
W1P = 0x00A00000
WDP = 0x00F00000
X1 = 0x01200000
YY = 0x01500000
X3 = 0x01800000
H1 = 0x01B00000
H2 = 0x02200000
ST1 = 0x02A00000
ST2 = 0x02A80000
ST3 = 0x02B00000
XSUB = 160 * 1024
HSUB = 448 * 1024
OOB = 0x80000000

P_Q, P_K, P_V, P_SH, P_H, P_D, P_BX, P_WG, P_WU, P_WD, P_OUT, P_DBG, P_WS = range(4, 30, 2)
sX, sR, sW, sB = 30, 31, 32, 33
sBOUND = 34
sT0 = 35
R_WS = 36
R_A, R_B, R_C, R_D, R_E = 40, 44, 48, 52, 56
sKS = 60
sTMP = 80
R_DBG = 96

SPIN = 1 << 20


def srd(S, r, p, size, add=None):
    if add is None:
        S(f"s_mov_b32 s{r}, s{p}\ns_mov_b32 s{r+1}, s{p+1}")
    else:
        S(f"s_add_u32 s{r}, s{p}, {add}\ns_addc_u32 s{r+1}, s{p+1}, 0")
    S(f"s_mov_b32 s{r+2}, {size:#x}\ns_mov_b32 s{r+3}, 0x00020000")


def R(r):
    return f"s[{r}:{r+3}]"


def v(a, n=1):
    return f"v{a}" if n == 1 else f"v[{a}:{a+n-1}]"


def a(i, n=1):
    return f"a{i}" if n == 1 else f"a[{i}:{i+n-1}]"


_uid = [0]


def lab(p):
    _uid[0] += 1
    return f"L_{p}_{_uid[0]}"


class Cfg:
    ts = False
    stop = None


def stamp(S, idx, vt0, vt1):
    if not Cfg.ts:
        return
    if idx == 0:
        stamp(S, 31, vt0, vt1)
    S.push()
    S(f"""{"s_memrealtime" if idx == 31 else "s_memtime"} s[92:93]
    s_lshl_b32 s94, s2, 2
    s_add_u32 s94, s94, s{sW}
    s_lshl_b32 s94, s94, 7
    s_add_u32 s94, s94, {TS + idx*4:#x}
    v_mov_b32 v{vt0}, s94
    s_waitcnt lgkmcnt(0)
    v_mov_b32 v{vt1}, s92
    s_mov_b64 s[94:95], exec
    s_mov_b64 exec, 1
    buffer_store_dword v{vt1}, v{vt0}, {R(R_WS)}, 0 offen
    s_mov_b64 exec, s[94:95]""")
    S.pop()


def poll(S, voff, vtgt, vtmp):
    l, d = lab("poll"), lab("pdone")
    S.drain()
    S(f"""s_mov_b32 s{sBOUND}, {SPIN}
    {l}:
    buffer_load_dword v{vtmp}, v{voff}, {R(R_WS)}, 0 offen sc1
    s_waitcnt vmcnt(0)
    v_cmp_gt_u32 vcc, v{vtgt}, v{vtmp}
    s_cbranch_vccz {d}
    s_sub_u32 s{sBOUND}, s{sBOUND}, 1
    s_cbranch_scc0 {l}
    s_branch L_end
    {d}:""")


def signal(S, sline_expr_sgpr, vt0, vt1):
    S.push()
    S(f"""v_mov_b32 v{vt0}, s{sline_expr_sgpr}
    v_mov_b32 v{vt1}, 1
    s_cmp_eq_u32 s{sW}, 0
    s_cselect_b32 exec_lo, 1, 0
    s_mov_b32 exec_hi, 0
    buffer_atomic_add v{vt1}, v{vt0}, {R(R_WS)}, 0 offen sc1
    s_mov_b64 exec, -1""")
    S.pop()
```

```python
from common import *
from prep import vTID, vL, vT0, vT1, ROLE, cvt_lo, cvt_hi

YST, CHS = 0, 2112
HB, HCH = 8448, 16640
UB, UCH, UCP = 75008, 12480, 6240

HX, HY, vD = ROLE, ROLE + 16, ROLE + 24
vAB, vBB = 2, 3
vYW0, vYW1, vTR = 4, 5, 6
vQA, vXA = 7, 10
AD = 12
ACC = 16
UOF = 48
EP = 60
POOL = 124


def h_loads(S):
    S(f"""s_mul_i32 s80, s{sX}, 80
    s_lshl_b32 s81, s{sR}, 2
    s_add_u32 s80, s80, s81
    s_add_u32 s84, s80, s{sW}
    s_lshl_b32 s81, s84, 12""")
    srd(S, R_E, P_H, 4096, add="s81")
    S(f"""s_cmp_lt_u32 s{sR}, 20
    s_cselect_b32 s{R_E+2}, 4096, 0
    v_lshlrev_b32 v{vT0}, 4, v{vL}
    v_subrev_u32 v{vT1}, 8, v{vT0}""")
    for it in range(4):
        S(f"buffer_load_dwordx4 {v(HX+4*it,4)}, v{vT0}, {R(R_E)}, 0 offen offset:{1024*it}")
    S(f"buffer_load_dwordx2 {v(HY,2)}, v{vT1}, {R(R_E)}, 0 offen")
    S(f"v_add_u32 v{vD}, 1016, v{vT0}")
    for it in range(1, 4):
        S(f"buffer_load_dwordx2 {v(HY+2*it,2)}, v{vD}, {R(R_E)}, 0 offen offset:{1024*(it-1)}")
    srd(S, R_C, P_D, 1280) if False else None
    return 8


def d_load(S):
    srd(S, R_D, P_D, 1280)
    S(f"""s_lshl_b32 s81, s84, 1
    v_mov_b32 v{vD}, s81
    buffer_load_ushort v{vD}, v{vD}, {R(R_D)}, 0 offen""")
    return 1


def h_build(S):
    T = 164
    S(f"""s_mul_i32 s80, s{sW}, {HCH}
    s_add_u32 s80, s80, {HB}
    v_lshl_add_u32 v{vT0}, v{vL}, 4, s80""")
    for i in range(4):
        S(f"v_mov_b32 v{T+i}, 0")
    S(f"""v_and_b32 v{vT1}, 3, v{vL}
    v_bfe_u32 v{T+4}, v{vL}, 2, 2
    v_mul_u32_u24 v{T+4}, 260, v{T+4}
    v_add_u32 v{vT1}, v{vT1}, v{T+4}
    v_lshl_add_u32 v{vT1}, v{vT1}, 4, s80
    ds_write_b128 v{vT1}, {v(T,4)}
    s_mul_i32 s81, s{sW}, {UCH}
    s_add_u32 s81, s81, {UB + 320*16}
    v_lshl_add_u32 v{vT1}, v{vL}, 4, s81""")
    for cp in range(2):
        for o in (0, 6 * 16):
            S(f"ds_write_b128 v{vT1}, {v(T,4)} offset:{cp*UCP + o}")
    for it in range(4):
        X, Y = HX + 4 * it, HY + 2 * it
        c0, c1, c2 = T + 8 + 12 * (it & 1), T + 12 + 12 * (it & 1), T + 16 + 12 * (it & 1)
        d = [Y, Y + 1, X, X + 1, X + 2, X + 3]
        for i in range(4):
            S(f"v_alignbit_b32 v{c0+i}, v{d[i+1]}, v{d[i]}, 16")
        for i in range(4):
            S(f"v_mov_b32 v{c1+i}, v{d[i+1]}")
        for i in range(4):
            S(f"v_alignbit_b32 v{c2+i}, v{d[i+2]}, v{d[i+1]}, 16")
        for sg, r_ in enumerate((c0, c1, c2, X)):
            S(f"ds_write_b128 v{vT0}, {v(r_,4)} offset:{48 + sg*4160 + 1024*it}")
    S(f"""v_and_b32 v{T}, 3, v{vL}
    v_bfe_u32 v{T+1}, v{vL}, 2, 2
    v_lshrrev_b32 v{T+2}, 4, v{vL}
    v_add_u32 v{T+3}, v{T+1}, v{T+2}
    v_mul_u32_u24 v{vAB}, 260, v{T}
    v_add_u32 v{vAB}, v{vAB}, v{T+3}
    v_lshl_add_u32 v{vAB}, v{vAB}, 4, s80""")
    S(f"""v_lshlrev_b32 v{T+4}, 16, v{vD}
    v_and_b32 v{T+5}, 1, v{T}
    v_cmp_eq_u32 vcc, 0, v{T+5}
    v_cndmask_b32 v{T+4}, v{vD}, v{T+4}, vcc
    v_cmp_eq_u32 vcc, 3, v{T+3}
    v_cndmask_b32 v{T+4}, 0, v{T+4}, vcc
    v_cmp_gt_u32 vcc, 2, v{T}
    v_cndmask_b32 v{AD}, v{T+4}, 0, vcc
    v_cndmask_b32 v{AD+1}, 0, v{T+4}, vcc
    v_mov_b32 v{AD+2}, 0
    v_mov_b32 v{AD+3}, 0""")
    S(f"""v_and_b32 v{T}, 15, v{vL}
    v_subrev_u32 v{T+1}, 4, v{T}
    v_cmp_gt_u32 vcc, 8, v{T+1}
    v_and_b32 v{T+3}, 7, v{T}
    v_cndmask_b32 v{T+1}, v{T+3}, v{T+1}, vcc
    v_cndmask_b32 v{T+3}, 0, 1, vcc""")
    S(f"""s_mul_i32 s81, s{sW}, {UCH}
    s_add_u32 s81, s81, {UB + 16*70}
    v_mul_u32_u24 v{T+4}, 10, v{T+1}
    v_sub_u32 v{T+4}, v{T+2}, v{T+4}
    v_lshlrev_b32 v{T+4}, 4, v{T+4}
    v_add_u32 v{T+4}, s81, v{T+4}
    v_mov_b32 v{T+5}, {UCP}
    v_cndmask_b32 v{T+5}, v{T+5}, 0, vcc
    v_add_u32 v{vBB}, v{T+4}, v{T+5}""")
    S(f"""v_lshrrev_b32 v{T+4}, 1, v{T+1}
    v_and_b32 v{T+5}, 1, v{T+1}
    v_lshlrev_b32 v{T+4}, 8, v{T+4}
    v_lshl_add_u32 v{T+4}, v{T+5}, 6, v{T+4}
    v_lshl_add_u32 v{T+4}, v{T+2}, 3, v{T+4}
    v_lshl_add_u32 v{T+4}, v{T+3}, 2, v{T+4}
    s_mul_i32 s81, s{sW}, {CHS}
    s_add_u32 s81, s81, {YST}
    v_add_u32 v{vYW0}, s81, v{T+4}
    v_add_u32 v{vYW1}, 1024, v{vYW0}""")
    S(f"""v_bfe_u32 v{T+4}, v{vL}, 2, 2
    v_mul_u32_u24 v{T+4}, {CHS}, v{T+4}
    v_lshl_add_u32 v{T+4}, v{T+2}, 5, v{T+4}
    v_and_b32 v{T+5}, 3, v{vL}
    v_lshl_add_u32 v{T+4}, v{T+5}, 3, v{T+4}
    s_lshl_b32 s81, s{sW}, 8
    s_add_u32 s81, s81, {YST}
    v_add_u32 v{vTR}, s81, v{T+4}""")
    S(f"""s_mul_i32 s82, s{sX}, 20
    s_add_u32 s82, s82, s{sR}
    v_lshrrev_b32 v{T+4}, 2, v{vL}
    v_mul_u32_u24 v{T+4}, 20480, v{T+4}
    v_lshl_add_u32 v{T+4}, v{T+5}, 5, v{T+4}
    s_mul_i32 s81, s{sW}, {16*20480}
    s_lshl_b32 s83, s82, 7
    s_add_u32 s81, s81, s83
    s_add_u32 s81, s81, {QZ:#x}
    v_add_u32 v{vQA}, s81, v{T+4}
    s_mul_i32 s81, s{sW}, {2*XSUB}
    s_lshl_b32 s83, s82, 10
    s_add_u32 s81, s81, s83
    s_add_u32 s81, s81, {X1:#x}
    v_lshl_add_u32 v{vXA}, v{vL}, 4, s81""")
    for it in range(5):
        S(f"""v_add_u32 v{T+4}, {64*it}, v{vL}
        v_mul_u32_u24 v{T+5}, 205, v{T+4}
        v_lshrrev_b32 v{T+5}, 11, v{T+5}
        v_mul_u32_u24 v{T+6}, 10, v{T+5}
        v_sub_u32 v{T+6}, v{T+4}, v{T+6}
        v_lshl_add_u32 v{T+5}, v{T+5}, 3, v{T+6}
        v_lshlrev_b32 v{T+5}, 4, v{T+5}
        v_cmp_gt_u32 vcc, 8, v{T+6}
        v_mov_b32 v{T+6}, {OOB:#x}
        v_cndmask_b32 v{UOF+2*it}, v{T+6}, v{T+5}, vcc
        v_add_u32 v{UOF+2*it+1}, 8, v{UOF+2*it}""")
    S(f"""s_lshl_b32 s81, s84, 12
    s_add_u32 s81, s81, {U_:#x}""")
    srd(S, R_A, P_WS, 4096, add="s81")


def wave0_poll(S, first_line_sgpr, nlines, tgt_setup, vt):
    d = lab("w0p")
    S.drain()
    S(f"""s_cmp_lg_u32 s{sW}, 0
    s_cbranch_scc1 {d}
    v_lshl_add_u32 v{vt}, v{vL}, 7, s{first_line_sgpr}
    v_cmp_gt_u32 vcc, {nlines}, v{vL}
    v_mov_b32 v{vt+1}, {OOB:#x}
    v_cndmask_b32 v{vt}, v{vt+1}, v{vt}, vcc""")
    S(tgt_setup)
    S(f"v_cndmask_b32 v{vt+1}, 0, v{vt+1}, vcc")
    poll(S, vt, vt + 1, vt + 2)
    S(f"{d}:\ns_barrier")


def u_dma(S):
    for it in (2, 3, 4, 1, 0):
        for cp in range(2):
            S(f"""s_mul_i32 s80, s{sW}, {UCH}
            s_add_u32 m0, s80, {UB + cp*UCP + it*1024}
            buffer_load_dwordx4 v{UOF+2*it+cp}, {R(R_A)}, 0 offen sc1 lds""", tag=f"U{min(it,2)}")


def mfma_seq(p):
    seq = []
    c_hi, c_lo = 2 * p + 1, 2 * p
    for m in range(16 * c_hi + 16):
        extra = []
        for c in (c_hi, c_lo):
            if m > 16 * c + 15:
                continue
            nu = 16 * c - m + 15
            for rho in (1, 0):
                mu = m + rho
                if mu >= 1:
                    seq.append((2 * c + rho, ('A', mu), ('B', nu)))
                if mu == 1:
                    extra.append((2 * c + rho, ('D', 0), ('B', nu)))
        seq += extra
    return seq


def frag_read(f, reg):
    k, i = f
    if k == 'A':
        return f"ds_read_b128 {v(reg,4)}, v{vAB} offset:{64*(i-1)}"
    return f"ds_read_b128 {v(reg,4)}, v{vBB} offset:{16*(10*(31-(i>>1)) + 4*(1-(i&1)))}"


class FragSched:
    def __init__(self, nslots, look):
        self.seq = mfma_seq(0) + mfma_seq(1)
        self.n0 = len(mfma_seq(0))
        self.nslots, self.look = nslots, look
        self.res = {}
        self.free = list(range(nslots))
        self.first = set()

    def next_use(self, f, i):
        for j in range(i, len(self.seq)):
            if f in self.seq[j][1:]:
                return j
        return 1 << 30

    def fetch(self, S, i, maxn, limit):
        n = 0
        j = i
        while n < maxn and j < min(limit, len(self.seq)):
            for f in self.seq[j][1:]:
                if f[0] == 'D' or f in self.res or n >= maxn:
                    continue
                if self.free:
                    sl = self.free.pop(0)
                else:
                    vic = max(self.res, key=lambda g: self.next_use(g, i))
                    if self.next_use(vic, i) <= j:
                        return n
                    sl = self.res.pop(vic)
                self.res[f] = sl
                S(frag_read(f, POOL + 4 * sl))
                n += 1
            j += 1
        return n

    def emit(self, S, lo, hi, fence=None):
        fence = fence or len(self.seq)
        for i in range(lo, hi):
            if i == 0:
                self.fetch(S, i, 8, min(fence, i + self.look))
            acc, fa, fb = self.seq[i]
            for f in (fa, fb):
                if f[0] != 'D' and f not in self.res:
                    self.fetch(S, i, 2, i + 1)
            ra = AD if fa[0] == 'D' else POOL + 4 * self.res[fa]
            rb = POOL + 4 * self.res[fb]
            d = v(ACC + 4 * acc, 4)
            c = d if acc in self.first else "0"
            self.first.add(acc)
            S(f"v_mfma_f32_16x16x32_bf16 {d}, {v(ra,4)}, {v(rb,4)}, {c}")
            self.fetch(S, i + 1, 1, min(fence, i + 1 + self.look))


def qz_loads(S, p):
    for a_ in range(2):
        so = 2621440 * p + 1310720 * a_
        S(f"s_mov_b32 s80, {so}")
        S(f"buffer_load_dwordx4 {v(EP+8*a_,4)}, v{vQA}, {R(R_WS)}, s80 offen sc1")
        S(f"buffer_load_dwordx4 {v(EP+8*a_+4,4)}, v{vQA}, {R(R_WS)}, s80 offen offset:16 sc1")


def y_stage(S, p):
    T = EP + 16
    for cl in range(2):
        for rho in range(2):
            A = ACC + 4 * (2 * (2 * p + cl) + rho)
            t = T + 2 * (2 * cl + rho)
            S(f"""v_cvt_pk_bf16_f32 v{t}, v{A}, v{A+2}
            v_cvt_pk_bf16_f32 v{t+1}, v{A+1}, v{A+3}
            ds_write2_b32 v{vYW1 if cl else vYW0}, v{t}, v{t+1} offset0:{8*rho} offset1:{8*rho+32}""")


def x1_out(S, p):
    Y = EP + 24
    F = EP + 32
    O = EP + 56
    for a_ in range(2):
        for par in range(2):
            S(f"ds_read_b64_tr_b16 {v(Y+4*a_+2*par,2)}, v{vTR} offset:{1024*a_ + 128*par}")
    for a_ in range(2):
        so = 4 * a_ * 2 * XSUB + p * XSUB
        S(f"s_mov_b32 s80, {so + YY - X1}")
        S(f"buffer_store_dwordx4 {v(Y+4*a_,4)}, v{vXA}, {R(R_WS)}, s80 offen sc1", tag="X1")
        for par in range(2):
            q = EP + 8 * a_ + 4 * par
            for h in range(2):
                f = F + 6 * (2 * par + h)
                cvt_lo(S, f, q + h)
                cvt_hi(S, f + 1, q + h)
                cvt_lo(S, f + 2, q + 2 + h)
                cvt_hi(S, f + 3, q + 2 + h)
                cvt_lo(S, f + 4, Y + 4 * a_ + 2 * par + h)
                cvt_hi(S, f + 5, Y + 4 * a_ + 2 * par + h)
                S(f"v_pk_fma_f32 {v(f,2)}, {v(f+2,2)}, {v(f+4,2)}, {v(f,2)}")
                S(f"v_cvt_pk_bf16_f32 v{O+4*a_+2*par+h}, v{f}, v{f+1}")
        S(f"s_mov_b32 s81, {so}")
        S(f"buffer_store_dwordx4 {v(O+4*a_,4)}, v{vXA}, {R(R_WS)}, s81 offen sc1", tag="X1")


def x1_line(S, p, sd):
    S(f"""s_lshl_b32 s{sd}, s{sX}, 1
    s_and_b32 s{sd+1}, s{sR}, 1
    s_add_u32 s{sd}, s{sd}, s{sd+1}
    s_lshl_b32 s{sd}, s{sd}, 7
    s_add_u32 s{sd}, s{sd}, {CNT + (L_X1 + 16*p)*128}""")
```

```python
import math
from common import *
from prep import vL, f2h, cvt_lo, cvt_hi
from conv import wave0_poll

vXB, vHB, vHB2 = 2, 3, 4
vA0 = 5
vHS, vHS7 = 8, 9
vXO, vOUT = 10, 11
vS1, vS2 = 12, 13
vL16, vT = 14, 15
ACCS = (16, 72)
BP, NB = 128, 6
AP, NA = 176, 6
ET = 200
CO = ET
EO = ET + 8
E1 = ET + 12
WDV = 232
LW1 = 20480
s4K = sB
R_X, R_H, R_Y, R_O = R_A, R_B, R_C, R_D

KAPPA = math.sqrt(2 / math.pi)
K1 = -2 * KAPPA * math.log2(math.e)


def ws_srd(S, r, const, mul_x, size):
    S(f"s_mul_i32 s80, s{sX}, {mul_x:#x}\ns_add_u32 s80, s80, {const:#x}")
    srd(S, r, P_WS, size, add="s80")


def setup(S):
    n, g, t = ET, ET + 1, ET + 2
    S(f"""s_movk_i32 s{s4K}, 4096
    s_mul_i32 s85, s{sR}, 7
    s_mul_i32 s80, s{sR}, 6
    s_add_u32 s80, s80, 24
    s_min_u32 s85, s85, s80
    s_lshr_b32 s86, s{sR}, 3
    s_and_b32 s87, s{sR}, 7
    v_and_b32 v{n}, 15, v{vL}
    v_lshrrev_b32 v{g}, 4, v{vL}
    v_lshlrev_b32 v{vL16}, 4, v{vL}
    v_lshlrev_b32 v{n}, 4, v{n}
    v_lshl_add_u32 v{t}, v{g}, 11, v{n}
    s_lshl_b32 s80, s{sW}, 8
    v_add_u32 v{vXB}, s80, v{t}
    s_mul_i32 s81, s{sW}, {14*8192}
    s_lshl_b32 s82, s86, 8
    s_add_u32 s81, s81, s82
    v_add_u32 v{vHB}, s81, v{t}
    s_cmp_eq_u32 s{sW}, 3
    s_cselect_b32 s81, {OOB:#x}, 0
    v_or_b32 v{vHB2}, s81, v{vHB}
    v_add_u32 v{vA0}, {LW1}, v{vL16}
    v_add_u32 v{vA0+1}, {LW1 + 9*7168}, v{vL16}
    v_add_u32 v{vA0+2}, {LW1 + 18*7168}, v{vL16}
    s_lshl_b32 s81, s85, 11
    s_add_u32 s81, s81, s80
    v_lshl_add_u32 v{t}, v{g}, 10, v{n}
    v_add_u32 v{vHS}, s81, v{t}
    s_add_u32 s81, s81, {12*1024}
    s_cmp_lt_u32 s{sR}, 24
    s_cselect_b32 s81, s81, {OOB:#x}
    v_lshrrev_b32 v{t+1}, 1, v{g}
    v_and_b32 v{t+2}, 1, v{g}
    v_lshl_add_u32 v{vHS7}, v{t+1}, 10, v{n}
    v_lshl_add_u32 v{vHS7}, v{t+2}, 3, v{vHS7}
    v_add_u32 v{vHS7}, s81, v{vHS7}""")
    S(f"""s_lshl_b32 s81, s{sW}, 2
    s_lshr_b32 s88, 0x4230, s81
    s_and_b32 s88, s88, 15
    s_mul_i32 s81, s87, 20
    s_lshl_b32 s83, s88, 2
    s_add_u32 s81, s81, s83
    s_lshl_b32 s83, s81, 10
    s_add_u32 s83, s83, s82
    v_add_u32 v{vXO}, s83, v{t}
    s_lshl_b32 s81, s81, 3
    s_lshl_b32 s83, s{sX}, 2
    s_add_u32 s83, s83, s86
    s_mul_i32 s83, s83, {32*1280}
    s_add_u32 s81, s81, s83
    v_mul_u32_u24 v{vOUT}, 160, v{n}
    v_mul_u32_u24 v{t+2}, 1280, v{t+2}
    v_lshl_add_u32 v{t+2}, v{t+1}, 4, v{t+2}
    v_add3_u32 v{vOUT}, v{vOUT}, v{t+2}, s81
    s_lshl_b32 s81, s{sX}, 12
    s_add_u32 s81, s81, s80
    s_add_u32 s81, s81, {ST1:#x}
    v_add_u32 v{vS1}, s81, v{n}
    s_lshl_b32 s81, s{sX}, 14
    s_lshl_b32 s83, s86, 11
    s_add_u32 s81, s81, s83
    s_add_u32 s81, s81, {ST2:#x}
    v_lshl_add_u32 v{vS2}, v{g}, 9, v{n}
    v_add_u32 v{vS2}, s81, v{vS2}""")


def w1_dma(S, ms=range(5)):
    t = vT
    S(f"""s_mul_i32 s80, s85, 20480
    s_lshl_b32 s81, s{sW}, 10
    s_add_u32 s80, s80, s81
    s_add_u32 s80, s80, {W1P:#x}
    v_add_u32 v{t}, s80, v{vL16}
    s_mul_i32 s81, s{sW}, 7168""")
    for m in ms:
        for i in range(7):
            S(f"""s_add_u32 m0, s81, {LW1 + 4*m*7168 + i*1024}
            s_mov_b32 s80, {i*20480 + m*4096}
            buffer_load_dwordx4 v{t}, {R(R_WS)}, s80 offen sc1 lds""", tag="W1L")


def wd_reg(q):
    return a(4 * q, 4) if q < 64 else v(WDV + 4 * (q - 64), 4)


def wd_load(S, t):
    S(f"""s_mul_i32 s80, s87, {54*5120}
    s_mul_i32 s81, s{sW}, {14*5120}
    s_add_u32 s80, s80, s81
    s_add_u32 s80, s80, {WDP:#x}
    v_add_u32 v{t}, s80, v{vL16}
    v_add_u32 v{t+1}, 4096, v{t}
    s_cmp_eq_u32 s{sW}, 3
    s_cselect_b32 s81, {OOB:#x}, 0
    v_or_b32 v{t+2}, s81, v{t}
    v_or_b32 v{t+3}, s81, v{t+1}""")
    for q in range(70):
        ad = t + ((q >> 2) & 1) + (2 if q >= 60 else 0)
        so = f"s{sKS + (q>>3)}"
        S(f"buffer_load_dwordx4 {wd_reg(q)}, v{ad}, {R(R_WS)}, {so} offen offset:{1024*(q&3)} sc1")


def wave_poll(S, sline, tgt, t):
    S(f"v_mov_b32 v{t}, s{sline}\nv_mov_b32 v{t+1}, {tgt}")
    poll(S, t, t + 1, t + 2)


def st1_task(S, sub, t):
    S(f"""s_lshr_b32 s80, s{sW}, 1
    s_mul_i32 s81, s80, {80*1024}
    s_and_b32 s82, s{sW}, 1
    s_lshl_b32 s82, s82, 4
    s_lshl_b32 s83, s{sR}, 5
    s_add_u32 s82, s82, s83
    s_add_u32 s81, s81, s82
    v_lshl_add_u32 v{t+8}, v{vL}, 10, s81
    v_add_u32 v{t+9}, 65536, v{t+8}
    v_cmp_gt_u32 vcc, 16, v{vL}
    v_mov_b32 v{t+10}, {OOB:#x}
    v_cndmask_b32 v{t+9}, v{t+10}, v{t+9}, vcc
    buffer_load_dwordx4 {v(t,4)}, v{t+8}, {R(R_X)}, 0 offen sc1
    buffer_load_dwordx4 {v(t+4,4)}, v{t+9}, {R(R_X)}, 0 offen sc1
    s_lshl_b32 s80, s80, 10
    s_add_u32 s80, s80, s82
    s_lshl_b32 s81, s{sX}, 12
    s_add_u32 s80, s80, s81
    s_add_u32 s89, s80, {ST1 + sub*2048:#x}""")


def st1_finish(S, t):
    A = t + 8
    S("s_mov_b32 s81, 0x3f803f80")
    for e in range(2):
        for j, r_ in enumerate((t + 2 * e, t + 2 * e + 1, t + 4 + 2 * e, t + 5 + 2 * e)):
            c0 = "0" if j == 0 else f"v{A+2*e}"
            c1 = "0" if j == 0 else f"v{A+2*e+1}"
            S(f"v_dot2_f32_bf16 v{A+2*e}, v{r_}, s81, {c0}")
            S(f"v_dot2_f32_bf16 v{A+2*e+1}, v{r_}, v{r_}, {c1}")
    rows_reduce(S, A)
    for sh in (1, 2, 4, 8):
        S(f"v_add_f32_dpp v{A}, v{A}, v{A} row_ror:{sh} row_mask:0xf bank_mask:0xf")
    S(f"""v_or_b32 v{A}, 1, v{A}
    v_lshrrev_b32 v{A+1}, 4, v{vL}
    v_lshl_add_u32 v{A+1}, v{A+1}, 2, s89
    v_and_b32 v{A+2}, 15, v{vL}
    v_cmp_eq_u32 vcc, 0, v{A+2}
    v_mov_b32 v{A+2}, {OOB:#x}
    v_cndmask_b32 v{A+1}, v{A+2}, v{A+1}, vcc
    buffer_store_dword v{A}, v{A+1}, {R(R_WS)}, 0 offen sc1""")


def rows_reduce(S, A):
    S(f"""v_permlane32_swap_b32 v{A}, v{A+2}
    v_permlane32_swap_b32 v{A+1}, v{A+3}
    v_add_f32 v{A}, v{A}, v{A+2}
    v_add_f32 v{A+1}, v{A+1}, v{A+3}
    v_permlane16_swap_b32 v{A}, v{A+1}
    v_add_f32 v{A}, v{A}, v{A+1}""")


def rows_gather(S, A):
    S(f"""v_mov_b32 v{A+1}, v{A}
    v_permlane16_swap_b32 v{A}, v{A+1}
    v_mov_b32 v{A+2}, v{A}
    v_mov_b32 v{A+3}, v{A+1}
    v_permlane32_swap_b32 v{A}, v{A+2}
    v_permlane32_swap_b32 v{A+1}, v{A+3}""")


def tagged_pair(S, t, vaddr, so, off0, off1):
    l, d = lab("tp"), lab("tpd")
    S.drain()
    S(f"""s_mov_b32 s{sBOUND}, {SPIN}
    {l}:
    buffer_load_dwordx4 {v(t,4)}, v{vaddr}, {R(R_WS)}, {so} offen offset:{off0} sc1
    buffer_load_dwordx4 {v(t+4,4)}, v{vaddr}, {R(R_WS)}, {so} offen offset:{off1} sc1
    s_waitcnt vmcnt(0)
    v_bitop3_b32 v{t+8}, v{t}, v{t+1}, v{t+2} bitop3:0x80
    v_bitop3_b32 v{t+9}, v{t+3}, v{t+4}, v{t+5} bitop3:0x80
    v_bitop3_b32 v{t+8}, v{t+8}, v{t+6}, v{t+7} bitop3:0x80
    v_bitop3_b32 v{t+8}, v{t+8}, v{t+9}, 1 bitop3:0x80
    v_cmp_eq_u32 vcc, 0, v{t+8}
    s_cbranch_vccz {d}
    s_sub_u32 s{sBOUND}, s{sBOUND}, 1
    s_cbranch_scc0 {l}
    s_branch L_end
    {d}:""")
    for i in range(4):
        S(f"v_add_f32 v{t+i}, v{t+i}, v{t+4+i}")


def mean_var(S, t):
    for e in (0, 2):
        S(f"v_mul_f32 v{t+e}, {f2h(1/640)}, v{t+e}\nv_mul_f32 v{t+e+1}, {f2h(1/640)}, v{t+e+1}")
    for e in (0, 2):
        S(f"v_fma_f32 v{t+e+1}, -v{t+e}, v{t+e}, v{t+e+1}")
    for e in (0, 2):
        S(f"v_max_f32 v{t+e+1}, 0, v{t+e+1}")
    for e in (0, 2):
        S(f"v_add_f32 v{t+e+1}, {f2h(1e-5)}, v{t+e+1}")


def gelu_coef(S, t):
    mean_var(S, t)
    for e in range(2):
        S(f"v_rsq_f32 v{t+2*e}, v{t+2*e+1}")
    for e in range(2):
        S(f"v_rcp_f32 v{CO+3*e+1}, v{t+2*e+1}")
    for e in range(2):
        S(f"v_mul_f32 v{CO+3*e}, {f2h(K1)}, v{t+2*e}\nv_mov_b32 v{CO+3*e+2}, v{t+2*e+1}")
    for e in range(2):
        S(f"v_mul_f32 v{CO+3*e+1}, {f2h(0.044715)}, v{CO+3*e+1}")
    for e in range(2):
        S(f"v_mul_f32 v{CO+3*e+1}, v{CO+3*e+1}, v{CO+3*e}")


def st3_loads(S, sub, t):
    S(f"""s_sub_u32 s80, s{sW}, s86
    s_lshl_b32 s80, s80, 11
    s_add_u32 s80, s80, {ST3 - ST2 + sub*8192:#x}
    buffer_load_dwordx4 {v(t,4)}, v{vS2}, {R(R_WS)}, s80 offen sc1
    buffer_load_dwordx4 {v(t+4,4)}, v{vS2}, {R(R_WS)}, s80 offen offset:256 sc1""")


def st3_coef(S, t):
    for i in range(4):
        S(f"v_add_f32 v{t+i}, v{t+i}, v{t+4+i}")
    rows_reduce(S, t)
    rows_gather(S, t)
    gelu_coef(S, t)


def b_load(S, ks, vb, srd_):
    b = BP + 8 * (ks % NB)
    S(f"buffer_load_dwordx4 {v(b,4)}, v{vb}, {R(srd_)}, s{sKS+ks} offen sc1")
    S(f"buffer_load_dwordx4 {v(b+4,4)}, v{vb}, {R(srd_)}, s{sKS+ks} offen offset:1024 sc1")


def b_swap(S, ks):
    b = BP + 8 * (ks % NB)
    S(f"v_swap_b32 v{b+2}, v{b+4}\nv_swap_b32 v{b+3}, v{b+5}")


def a_read(S, f):
    ks, i = divmod(f, 7)
    S(f"ds_read_b128 {v(AP + 4*(f % NA), 4)}, v{vA0 + ks//9} offset:{(ks % 9)*7168 + i*1024}")


def g1_pre(S):
    for ks in range(NB - 1):
        b_load(S, ks, vXB, R_X)


def g1(S, acc):
    for f in range(NA - 1):
        a_read(S, f)
    b_swap(S, 0)
    for ks in range(20):
        b = BP + 8 * (ks % NB)
        for i in range(7):
            f = 7 * ks + i
            A = v(AP + 4 * (f % NA), 4)
            for tt in range(2):
                d = v(acc + 8 * i + 4 * tt, 4)
                S(f"v_mfma_f32_16x16x32_bf16 {d}, {A}, {v(b+4*tt,4)}, {d if ks else 0}")
                if tt == 0 and f + NA - 1 < 140:
                    a_read(S, f + NA - 1)
                if tt == 1:
                    if i == 0 and ks + NB - 1 < 20:
                        b_load(S, ks + NB - 1, vXB, R_X)
                    if i == 4 and ks + 1 < 20:
                        b_swap(S, ks + 1)


def epi(S, acc, pk=False):
    k = 0
    for i in range(7):
        for tt in range(2):
            c = acc + 8 * i + 4 * tt
            ca, cb, cc = CO + 3 * tt, CO + 3 * tt + 1, CO + 3 * tt + 2
            t = E1 + 2 * (k & 1)
            k += 1
            o = EO + 2 * tt + (i & 1) if i < 6 else EO + tt
            S(f"""v_mul_f32 v{t}, v{c}, v{c}
            v_mul_f32 v{t+1}, v{c+1}, v{c+1}
            v_fma_f32 v{t}, v{t}, v{cb}, v{ca}
            v_fma_f32 v{t+1}, v{t+1}, v{cb}, v{ca}
            v_mul_f32 v{t}, v{t}, v{c}
            v_mul_f32 v{t+1}, v{t+1}, v{c+1}
            v_exp_f32 v{t}, v{t}
            v_exp_f32 v{t+1}, v{t+1}
            v_mul_f32 v{c}, v{c}, v{c+2}
            v_mul_f32 v{c+1}, v{c+1}, v{c+3}
            v_fma_f32 v{t}, v{t}, v{cc}, v{cc}
            v_fma_f32 v{t+1}, v{t+1}, v{cc}, v{cc}
            v_rcp_f32 v{t}, v{t}
            v_rcp_f32 v{t+1}, v{t+1}
            v_mul_f32 v{c}, v{c}, v{t}
            v_mul_f32 v{c+1}, v{c+1}, v{t+1}
            v_cvt_pk_bf16_f32 v{o}, v{c}, v{c+1}""")
        if i & 1:
            so = ("0", f"s{s4K}", f"s{sKS+1}")[i >> 1]
            S(f"buffer_store_dwordx4 {v(EO,4)}, v{vHS}, {R(R_H)}, {so} offen sc1", tag="H")
    S(f"v_permlane16_swap_b32 v{EO}, v{EO+1}")
    S(f"buffer_store_dwordx2 {v(EO,2)}, v{vHS7}, {R(R_H)}, 0 offen sc1", tag="H")


def g2_pre(S):
    for ks in range(NB - 1):
        b_load(S, ks, vHB, R_H)


def g2(S, acc):
    b_swap(S, 0)
    for ks in range(14):
        b = BP + 8 * (ks % NB)
        for dt in range(5):
            for tt in range(2):
                d = v(acc + 8 * dt + 4 * tt, 4)
                S(f"v_mfma_f32_16x16x32_bf16 {d}, {wd_reg(5*ks+dt)}, {v(b+4*tt,4)}, {d if ks else 0}")
                if tt == 1:
                    kn = ks + NB - 1
                    if dt == 0 and kn < 14:
                        b_load(S, kn, vHB if kn < 12 else vHB2, R_H)
                    if dt == 3 and ks + 1 < 14:
                        b_swap(S, ks + 1)


def reduce4(S, acc, T):
    ad0, ad1 = vT, T + 24
    S(f"""s_lshr_b32 s80, s{sW}, 1
    s_mul_i32 s80, s80, 10240
    s_sub_u32 s81, 10240, s80
    v_add_u32 v{ad0}, s80, v{vL16}
    v_add_u32 v{ad1}, s81, v{vL16}""")
    done = lab("red")
    L = [lab("rw") for _ in range(4)]
    S.drain()
    S(f"""s_cmp_eq_u32 s{sW}, 1
    s_cbranch_scc1 {L[1]}
    s_cmp_eq_u32 s{sW}, 2
    s_cbranch_scc1 {L[2]}
    s_cmp_eq_u32 s{sW}, 3
    s_cbranch_scc1 {L[3]}""")
    plan = {0: (range(6, 10), range(0, 6), (4, 5), (0, 1, 2, 3)),
            1: (range(0, 6), range(6, 10), (8, 9), (6, 7)),
            2: (range(6, 10), range(0, 6), (0, 1, 2, 3), (4, 5)),
            3: (range(0, 6), range(6, 10), (6, 7), (8, 9))}
    for w in range(4):
        s1, k1, s2, k2 = plan[w]
        S(f"{L[w]}:\ns_nop 7")
        S.reset()
        for tl in s1:
            S(f"ds_write_b128 v{ad0}, {v(acc+4*tl,4)} offset:{1024*tl}")
        S("s_waitcnt lgkmcnt(0)\ns_barrier")
        order = list(s2) + list(k2)
        for j, tl in enumerate(order):
            S(f"ds_read_b128 {v(T+4*j,4)}, v{ad0} offset:{1024*tl}")
        for j, tl in enumerate(order):
            for h in (0, 2):
                S(f"v_pk_add_f32 {v(acc+4*tl+h,2)}, {v(acc+4*tl+h,2)}, {v(T+4*j+h,2)}")
            if tl in s2:
                S(f"ds_write_b128 v{ad0}, {v(acc+4*tl,4)} offset:{1024*tl}")
        S("s_waitcnt lgkmcnt(0)\ns_barrier")
        for j, tl in enumerate(k2):
            S(f"ds_read_b128 {v(T+4*j,4)}, v{ad1} offset:{1024*tl}")
        for j, tl in enumerate(k2):
            for h in (0, 2):
                S(f"v_pk_add_f32 {v(acc+4*j+h,2)}, {v(acc+4*tl+h,2)}, {v(T+4*j+h,2)}")
        if w > 0:
            for j in range(8, 16):
                S(f"v_mov_b32 v{acc+j}, 0")
        S.drain()
        if w < 3:
            S(f"s_branch {done}")
    S(f"{done}:")
    S.reset()


def own_loads(S, srd_, d):
    S(f"""s_cmp_eq_u32 s{sW}, 0
    s_cselect_b32 s80, s{s4K}, {OOB:#x}
    v_add_u32 v{vT}, s80, v{vXO}
    buffer_load_dwordx4 {v(d,4)}, v{vXO}, {R(srd_)}, 0 offen sc1
    buffer_load_dwordx4 {v(d+4,4)}, v{vT}, {R(srd_)}, 0 offen sc1""")


def add_resid(S, acc, d, t):
    for j in range(8):
        cvt_lo(S, t, d + j)
        cvt_hi(S, t + 1, d + j)
        S(f"v_pk_add_f32 {v(acc+2*j,2)}, {v(acc+2*j,2)}, {v(t,2)}")
        t ^= 2


def part_stats(S, acc, A, lds_off):
    for e in range(2):
        regs = [acc + 4 * e + j for j in range(4)] + [acc + 8 + 4 * e + j for j in range(4)]
        S(f"v_add_f32 v{A+2*e}, v{regs[0]}, v{regs[1]}\nv_mul_f32 v{A+2*e+1}, v{regs[0]}, v{regs[0]}")
        S(f"v_fmac_f32 v{A+2*e+1}, v{regs[1]}, v{regs[1]}")
        for r_ in regs[2:]:
            S(f"v_add_f32 v{A+2*e}, v{A+2*e}, v{r_}\nv_fmac_f32 v{A+2*e+1}, v{r_}, v{r_}")
    rows_reduce(S, A)
    S(f"""v_and_b32 v{A+1}, 0xf0, v{vL16}
    v_lshrrev_b32 v{A+2}, 4, v{vL}
    v_lshl_add_u32 v{A+1}, v{A+2}, 2, v{A+1}
    s_lshl_b32 s80, s{sW}, 8
    v_add_u32 v{A+1}, s80, v{A+1}
    ds_write_b32 v{A+1}, v{A} offset:{lds_off}""")


def stats_publish(S, T, lds_off, base, tag=None):
    d = lab("sp")
    S.push()
    S(f"""s_cmp_lg_u32 s{sW}, 0
    s_cbranch_scc1 {d}
    v_lshlrev_b32 v{T+4}, 2, v{vL}""")
    for j in range(4):
        S(f"ds_read_b32 v{T+j}, v{T+4} offset:{lds_off + 256*j}")
    S(f"""s_lshl_b32 s80, s{sX}, 14
    s_lshl_b32 s81, s{sR}, 8
    s_add_u32 s80, s80, s81
    s_add_u32 s80, s80, {base:#x}
    v_add_u32 v{T+4}, s80, v{T+4}
    v_add_f32 v{T}, v{T}, v{T+1}
    v_add_f32 v{T+2}, v{T+2}, v{T+3}
    v_add_f32 v{T}, v{T}, v{T+2}
    v_or_b32 v{T}, 1, v{T}
    buffer_store_dword v{T}, v{T+4}, {R(R_WS)}, 0 offen sc1
    {d}:""")
    S.pop()


def x3_compute(S, acc, yr, t):
    rows_reduce(S, t)
    rows_gather(S, t)
    mean_var(S, t)
    for e in (0, 2):
        S(f"v_rsq_f32 v{t+e+1}, v{t+e+1}")
    for e in (0, 2):
        S(f"v_mul_f32 v{t+e}, v{t+e}, v{t+e+1}")
    u = t + 4
    for j in range(8):
        e = 2 * ((j >> 1) & 1)
        cvt_lo(S, u, yr + j)
        cvt_hi(S, u + 1, yr + j)
        for h in range(2):
            S(f"v_fma_f32 v{u+2+h}, v{acc+2*j+h}, v{t+e+1}, -v{t+e}")
        for h in range(2):
            S(f"v_fmac_f32 v{acc+2*j+h}, v{u+2+h}, v{u+h}")
        S(f"v_cvt_pk_bf16_f32 v{yr+j}, v{acc+2*j}, v{acc+2*j+1}")


def line_h(S, sd, layer, sub, shard_sgpr):
    S(f"""s_lshl_b32 s{sd}, s{sX}, 3
    s_add_u32 s{sd}, s{sd}, s{shard_sgpr}
    s_lshl_b32 s{sd}, s{sd}, 7
    s_add_u32 s{sd}, s{sd}, {CNT + (L_H + 64*layer + 4*sub)*128}""")


def line_x3(S, sd, sub, tg_sgpr):
    S(f"""s_lshl_b32 s{sd}, s{sX}, 3
    s_add_u32 s{sd}, s{sd}, s{tg_sgpr}
    s_lshl_b32 s{sd}, s{sd}, 7
    s_add_u32 s{sd}, s{sd}, {CNT + (L_X3 + 4*sub)*128}""")


def ffn(S, stop_at):
    T = E1 + 4
    setup(S)
    stamp(S, 9, ET, ET + 1)
    S(f"s_mov_b32 s80, {CNT + L_WD*128}")
    wave0_poll(S, 80, 16, f"""v_mov_b32 v{T+1}, 10
    v_cmp_lt_u32 s[82:83], 7, v{vL}
    v_cndmask_b32 v{T+1}, v{T+1}, 9, s[82:83]""", T)
    w1_dma(S)
    wd_load(S, T)
    S.drain()
    S("s_barrier")
    stamp(S, 10, ET, ET + 1)
    for layer in range(2):
        XB, HB_ = (X1, H1) if layer == 0 else (X3, H2)
        ts = 11 + 10 * layer
        for sub in range(2):
            acc = ACCS[sub]
            ws_srd(S, R_X, XB + sub * XSUB, 2 * XSUB, XSUB)
            ws_srd(S, R_H, HB_ + sub * HSUB, 2 * HSUB, HSUB)
            if layer == 0:
                S(f"s_mov_b32 s80, {CNT + (L_X1 + 16*sub)*128}")
                wave0_poll(S, 80, 16, f"v_mov_b32 v{T+1}, 10", T)
                st1_task(S, sub, T)
                g1_pre(S)
                st1_finish(S, T)
            else:
                line_x3(S, 80, sub, sW)
                wave_poll(S, 80, 8, T)
                st3_loads(S, sub, T)
                g1_pre(S)
                st3_coef(S, T)
            g1(S, acc)
            stamp(S, ts + 2 * sub, E1, E1 + 1)
            if layer == 0:
                tagged_pair(S, T, vS1, "0", sub * 2048, sub * 2048 + 1024)
                gelu_coef(S, T)
            epi(S, acc)
            S.wait_tag("H")
            line_h(S, 80, layer, sub, 86)
            S("s_barrier")
            signal(S, 80, T, T + 1)
            stamp(S, ts + 2 * sub + 1, E1, E1 + 1)
        stop_at(S, f"g1_{layer}")
        for sub in range(2):
            acc = ACCS[sub]
            XR, YR = acc + 40, acc + 48
            ws_srd(S, R_H, HB_ + sub * HSUB, 2 * HSUB, HSUB)
            ws_srd(S, R_X, XB + sub * XSUB, 2 * XSUB, XSUB)
            line_h(S, 80, layer, sub, sW)
            wave_poll(S, 80, 8, T)
            g2_pre(S)
            own_loads(S, R_X, XR)
            if layer == 0:
                ws_srd(S, R_Y, YY + sub * XSUB, 2 * XSUB, XSUB)
                own_loads(S, R_Y, YR)
            g2(S, acc)
            stamp(S, ts + 4 + 3 * sub, E1, E1 + 1)
            reduce4(S, acc, BP)
            add_resid(S, acc, XR, T)
            stamp(S, ts + 5 + 3 * sub, E1, E1 + 1)
            if layer == 0:
                part_stats(S, acc, T, 0)
                S.wait_ds()
                S("s_barrier")
                stats_publish(S, T, 0, ST2 + sub * 8192)
                tagged_pair(S, T, vS2, "0" if sub == 0 else f"s{sKS+1}", 0, 256)
                x3_compute(S, acc, YR, T)
                ws_srd(S, R_O, X3 + sub * XSUB, 2 * XSUB, XSUB)
                S(f"""s_cmp_eq_u32 s{sW}, 0
                s_cselect_b32 s80, s{s4K}, {OOB:#x}
                v_add_u32 v{vT}, s80, v{vXO}
                buffer_store_dwordx4 {v(YR,4)}, v{vXO}, {R(R_O)}, 0 offen sc1
                buffer_store_dwordx4 {v(YR+4,4)}, v{vT}, {R(R_O)}, 0 offen sc1""")
                part_stats(S, acc, T, 2048)
                S.wait_ds()
                S("s_barrier")
                stats_publish(S, T, 2048, ST3 + sub * 8192)
                S("s_waitcnt vmcnt(0)")
                line_x3(S, 80, sub, 86)
                S("s_barrier")
                signal(S, 80, T, T + 1)
            else:
                srd(S, R_O, P_OUT, 2048 * 1280)
                for j in range(8):
                    S(f"v_cvt_pk_bf16_f32 v{XR+j}, v{acc+2*j}, v{acc+2*j+1}")
                for s_ in range(2):
                    S(f"v_permlane16_swap_b32 v{XR+4*s_}, v{XR+4*s_+2}\nv_permlane16_swap_b32 v{XR+4*s_+1}, v{XR+4*s_+3}")
                S(f"""s_cmp_eq_u32 s{sW}, 0
                s_cselect_b32 s80, 32, {OOB:#x}
                v_add_u32 v{vT}, s80, v{vOUT}
                s_mov_b32 s80, {sub*1024*1280}
                buffer_store_dwordx4 {v(XR,4)}, v{vOUT}, {R(R_O)}, s80 offen
                buffer_store_dwordx4 {v(XR+4,4)}, v{vT}, {R(R_O)}, s80 offen
                s_barrier""")
            stamp(S, ts + 6 + 3 * sub, E1, E1 + 1)
        stop_at(S, f"g2_{layer}")
    S("s_waitcnt vmcnt(0)")
```

```python
from common import *

vTID, vL = 0, 1
vKB, vKA, vSO, vQO, vUO, vQZO = 2, 3, 4, 5, 6, 7
vT0, vT1 = 8, 9
KR, VR, SR, QR = 10, 32, 48, 56
vRDY = 66
ROLE = 68
KF, SF, UF = 164, 208, 224
QF = 164
LDS_QST = 0


def prologue(S):
    S(f"""s_cmp_ge_u32 s2, 256
    s_cbranch_scc1 L_end
    s_load_dwordx16 s[4:19], s[0:1], 0
    s_load_dwordx8 s[20:27], s[0:1], 64
    s_load_dwordx2 s[28:29], s[0:1], 96
    v_lshrrev_b32 v{vT0}, 6, v0
    v_and_b32 v{vL}, 63, v0
    s_and_b32 s{sX}, s2, 7
    s_lshr_b32 s{sR}, s2, 3
    v_readfirstlane_b32 s{sW}, v{vT0}""")
    for i in range(20):
        S(f"s_mov_b32 s{sKS+i}, {i*8192}")
    S(f"""v_and_b32 v{vT0}, 7, v{vL}
    v_lshrrev_b32 v{vT1}, 3, v{vL}
    v_lshlrev_b32 v{vQZO}, 4, v{vT0}
    s_mul_i32 s80, s2, {8*1280}
    s_mul_i32 s81, s{sW}, 320
    s_add_u32 s80, s80, s81
    v_mul_u32_u24 v{vQO}, 1280, v{vT0}
    v_lshl_add_u32 v{vQO}, v{vT1}, 3, v{vQO}
    v_add_u32 v{vQO}, s80, v{vQO}
    s_mul_i32 s80, s2, 20480
    s_mul_i32 s81, s{sW}, 5120
    s_add_u32 s80, s80, s81
    s_add_u32 s80, s80, {QZ:#x}
    v_lshl_add_u32 v{vQZO}, v{vT1}, 7, v{vQZO}
    v_add_u32 v{vQZO}, s80, v{vQZO}
    s_movk_i32 s{sT0}, 5120
    s_waitcnt lgkmcnt(0)""")
    srd(S, R_WS, P_WS, 0x10000000)
    srd(S, R_DBG, P_DBG, 256)
    srd(S, R_D, P_Q, 2048 * 1280)


def kv_addr(S):
    srd(S, R_A, P_K, 2048 * 1280)
    srd(S, R_B, P_V, 2048 * 1280)
    srd(S, R_C, P_SH, 640 * 8)
    S(f"""s_mul_i32 s80, s{sR}, {96*1280}
    s_mul_i32 s81, s{sX}, 160
    s_mul_i32 s82, s{sW}, 40
    s_add_u32 s81, s81, s82
    s_add_u32 s80, s80, s81
    v_mul_u32_u24 v{vT1}, 43, v{vL}
    v_lshrrev_b32 v{vT1}, 9, v{vT1}
    v_mul_u32_u24 v{vT0}, 12, v{vT1}
    v_sub_u32 v{vT0}, v{vL}, v{vT0}
    v_mul_u32_u24 v{vKB}, {8*1280}, v{vT0}
    v_lshl_add_u32 v{vKB}, v{vT1}, 3, v{vKB}
    v_add_u32 v{vKB}, s80, v{vKB}
    v_subrev_u32 v{vKA}, 3840, v{vKB}
    s_lshl_b32 s81, s81, 2
    v_lshl_add_u32 v{vSO}, v{vT1}, 5, s81
    s_mul_i32 s82, s{sR}, 12
    s_sub_u32 s82, 256, s82
    v_cmp_gt_u32 vcc, s82, v{vT0}
    v_cmp_gt_u32 s[82:83], 5, v{vT1}
    s_and_b64 vcc, vcc, s[82:83]
    v_mov_b32 v{vUO}, {OOB:#x}
    v_cndmask_b32 v{vKB}, v{vUO}, v{vKB}, vcc
    v_cndmask_b32 v{vKA}, v{vUO}, v{vKA}, vcc
    v_cndmask_b32 v{vSO}, v{vUO}, v{vSO}, vcc""")
    S(f"""s_lshl_b32 s81, s81, 9
    s_mul_i32 s82, s{sR}, 192
    s_sub_u32 s81, s81, s82
    s_add_u32 s81, s81, {U_ + 4080:#x}
    v_lshlrev_b32 v{vT1}, 14, v{vT1}
    v_lshlrev_b32 v{vT0}, 4, v{vT0}
    v_sub_u32 v{vT1}, v{vT1}, v{vT0}
    v_add_u32 v{vT1}, s81, v{vT1}
    v_cndmask_b32 v{vUO}, v{vUO}, v{vT1}, vcc""")


def zero_flags(S):
    z = KF
    S("\n".join(f"v_mov_b32 v{z+i}, 0" for i in range(4)))
    l = lab("nz")
    S.push()
    S(f"""s_cmp_lg_u32 s2, 0
    s_cbranch_scc1 {l}
    v_lshlrev_b32 v{vT0}, 7, v0
    buffer_store_dword v{z}, v{vT0}, {R(R_WS)}, 0 offen sc1
    v_add_u32 v{vT1}, {256*128}, v{vT0}
    v_cmp_gt_u32 vcc, {L_END-256}, v0
    v_mov_b32 v{vT0}, {OOB:#x}
    v_cndmask_b32 v{vT1}, v{vT0}, v{vT1}, vcc
    buffer_store_dword v{z}, v{vT1}, {R(R_WS)}, 0 offen sc1
    {l}:""")
    S.pop()
    S(f"""s_lshl_b32 s80, s{sX}, 12
    s_lshr_b32 s81, s{sW}, 1
    s_lshl_b32 s82, s81, 10
    s_add_u32 s80, s80, s82
    s_lshl_b32 s82, s{sR}, 5
    s_add_u32 s80, s80, s82
    s_and_b32 s83, s{sW}, 1
    s_lshl_b32 s82, s83, 4
    s_add_u32 s80, s80, s82
    s_add_u32 s80, s80, {ST1:#x}
    v_lshl_add_u32 v{vT0}, v{vL}, 11, s80
    s_lshl_b32 s80, s{sX}, 14
    s_lshl_b32 s82, s81, 13
    s_add_u32 s80, s80, s82
    s_lshl_b32 s82, s{sR}, 8
    s_add_u32 s80, s80, s82
    s_lshl_b32 s82, s83, 7
    s_add_u32 s80, s80, s82
    s_add_u32 s80, s80, {ST2 - 128:#x}
    v_lshl_add_u32 v{vT1}, v{vL}, 4, s80
    v_cmp_gt_u32 vcc, 2, v{vL}
    v_cndmask_b32 v{vT1}, v{vT1}, v{vT0}, vcc
    v_subrev_u32 v{z+4}, 2, v{vL}
    v_cmp_gt_u32 vcc, 6, v{z+4}
    v_mov_b32 v{vT0}, {OOB:#x}
    v_cndmask_b32 v{vT1}, v{vT1}, v{vT0}, vcc
    v_cmp_lt_u32 vcc, 15, v{vL}
    v_cndmask_b32 v{vT1}, v{vT1}, v{vT0}, vcc
    buffer_store_dwordx4 {v(z,4)}, v{vT1}, {R(R_WS)}, 0 offen sc1""")


def kv_loads(S):
    S(f"buffer_load_dwordx4 {v(SR,4)}, v{vSO}, {R(R_C)}, 0 offen")
    S(f"buffer_load_dwordx4 {v(SR+4,4)}, v{vSO}, {R(R_C)}, 0 offen offset:16")
    for i in range(11):
        if i < 3:
            S(f"buffer_load_dwordx2 {v(KR+2*i,2)}, v{vKA}, {R(R_A)}, 0 offen offset:{1280*i}")
        else:
            j = i - 3
            so = "0" if j < 4 else f"s{sT0}"
            S(f"buffer_load_dwordx2 {v(KR+2*i,2)}, v{vKB}, {R(R_A)}, {so} offen offset:{1280*(j&3)}")
        if i >= 3:
            j = i - 3
            so = "0" if j < 4 else f"s{sT0}"
            S(f"buffer_load_dwordx2 {v(VR+2*j,2)}, v{vKB}, {R(R_B)}, {so} offen offset:{1280*(j&3)}")
    return 21


def q_loads(S):
    for it in range(5):
        S(f"buffer_load_dwordx2 {v(QR+2*it,2)}, v{vQO}, {R(R_D)}, 0 offen offset:{64*it}")
    return 5


def ready_load(S):
    S(f"v_mov_b32 v{vRDY}, 0")
    S(f"buffer_load_dword v{vRDY}, v{vRDY}, {R(R_DBG)}, 0 offen sc1")


def ready_flag(S, nloads):
    l = lab("nr")
    S.push()
    S(f"""s_cmp_lg_u32 s2, 0
    s_cbranch_scc1 {l}
    s_waitcnt vmcnt({nloads})
    s_barrier
    v_mov_b32 v{vT0}, 0
    v_mov_b32 v{vT1}, 1
    s_cmp_eq_u32 s{sW}, 0
    s_cselect_b32 exec_lo, 1, 0
    s_mov_b32 exec_hi, 0
    buffer_store_dword v{vT1}, v{vT0}, {R(R_DBG)}, 0 offen sc1
    s_mov_b64 exec, -1
    {l}:""")
    S.pop()


def cvt_lo(S, d, s):
    S(f"v_lshlrev_b32 v{d}, 16, v{s}")


def cvt_hi(S, d, s):
    S(f"v_and_b32 v{d}, 0xffff0000, v{s}")


def kv_compute(S):
    for c in range(4):
        for j in range(4):
            (cvt_hi if j & 1 else cvt_lo)(S, SF + 4 * j + c, SR + 2 * c + (j >> 1))

    def cvk(i):
        for c in range(4):
            (cvt_hi if c & 1 else cvt_lo)(S, KF + 4 * i + c, KR + 2 * i + (c >> 1))
    for i in range(3):
        cvk(i)
    for tt in range(8):
        cvk(tt + 3)
        if tt == 0:
            ready_load(S)
        u = UF + 4 * tt
        for h in (0, 2):
            S(f"v_pk_mul_f32 {v(u+h,2)}, {v(KF+4*tt+h,2)}, {v(SF+12+h,2)}")
        for j in (2, 1, 0):
            for h in (0, 2):
                S(f"v_pk_fma_f32 {v(u+h,2)}, {v(KF+4*(tt+3-j)+h,2)}, {v(SF+4*j+h,2)}, {v(u+h,2)}")
        for c in range(4):
            (cvt_hi if c & 1 else cvt_lo)(S, KF + 4 * tt + c, VR + 2 * tt + (c >> 1))
        for h in (0, 2):
            S(f"v_pk_mul_f32 {v(u+h,2)}, {v(u+h,2)}, {v(KF+4*tt+h,2)}")
    for c in range(4):
        o = KR + 2 + 4 * c
        for e in range(4):
            S(f"v_cvt_pk_bf16_f32 v{o+e}, v{UF+4*(7-2*e)+c}, v{UF+4*(6-2*e)+c}")
        S(f"buffer_store_dwordx4 {v(o,4)}, v{vUO}, {R(R_WS)}, 0 offen sc1", tag="U")
        if c < 3:
            S(f"v_add_u32 v{vUO}, 4096, v{vUO}")


def q_stats(S):
    for it in range(5):
        for c in range(4):
            (cvt_hi if c & 1 else cvt_lo)(S, QF + 4 * it + c, QR + 2 * it + (c >> 1))
    A, B = QF + 20, QF + 22
    S(f"v_pk_add_f32 {v(A,2)}, {v(QF,2)}, {v(QF+2,2)}")
    S(f"v_pk_mul_f32 {v(B,2)}, {v(QF,2)}, {v(QF,2)}")
    S(f"v_pk_fma_f32 {v(B,2)}, {v(QF+2,2)}, {v(QF+2,2)}, {v(B,2)}")
    for i in range(4, 20, 2):
        S(f"v_pk_add_f32 {v(A,2)}, {v(A,2)}, {v(QF+i,2)}")
        S(f"v_pk_fma_f32 {v(B,2)}, {v(QF+i,2)}, {v(QF+i,2)}, {v(B,2)}")
    S(f"""v_add_f32 v{A}, v{A}, v{A+1}
    v_add_f32 v{B}, v{B}, v{B+1}
    v_permlane32_swap_b32 v{A}, v{B}
    v_add_f32 v{A}, v{A}, v{B}
    v_mov_b32 v{B}, v{A}
    v_permlane16_swap_b32 v{A}, v{B}
    v_add_f32 v{A}, v{A}, v{B}
    v_add_f32_dpp v{A}, v{A}, v{A} row_ror:8 row_mask:0xf bank_mask:0xf
    v_lshrrev_b32 v{vT0}, 5, v{vL}
    v_and_b32 v{vT1}, 7, v{vL}
    v_lshlrev_b32 v{vT1}, 4, v{vT1}
    v_lshl_add_u32 v{vT0}, v{vT0}, 7, v{vT1}
    s_lshl_b32 s80, s{sW}, 2
    v_add_u32 v{vT0}, s80, v{vT0}
    ds_write_b32 v{vT0}, v{A} offset:{LDS_QST}""")


def arrive_first(S, line_base, vt):
    l, d = lab("rdy"), lab("rdyd")
    S.push()
    S(f"""s_cmp_lg_u32 s{sW}, 0
    s_cbranch_scc1 {d}
    s_mov_b32 s{sBOUND}, {SPIN}
    {l}:
    v_readfirstlane_b32 s80, v{vRDY}
    s_cmp_lg_u32 s80, 0
    s_cbranch_scc1 {l}_ok
    v_mov_b32 v{vRDY}, 0
    buffer_load_dword v{vRDY}, v{vRDY}, {R(R_DBG)}, 0 offen sc1
    s_waitcnt vmcnt(0)
    s_sub_u32 s{sBOUND}, s{sBOUND}, 1
    s_cbranch_scc0 {l}
    s_branch L_end
    {l}_ok:""")
    line_xr(S, 80, line_base)
    S(f"""v_mov_b32 v{vt}, s80
    v_mov_b32 v{vt+1}, 1
    s_mov_b64 exec, 1
    buffer_atomic_add v{vt+1}, v{vt}, {R(R_WS)}, 0 offen sc1
    s_mov_b64 exec, -1
    {d}:""")
    S.pop()


def q_finish(S):
    A = QF + 20
    S(f"""ds_read_b128 {v(A,4)}, v{vT1} offset:{LDS_QST}
    ds_read_b128 {v(A+4,4)}, v{vT1} offset:{LDS_QST+128}
    v_pk_add_f32 {v(A,2)}, {v(A,2)}, {v(A+2,2)}
    v_pk_add_f32 {v(A+4,2)}, {v(A+4,2)}, {v(A+6,2)}
    v_add_f32 v{A}, v{A}, v{A+1}
    v_add_f32 v{A+4}, v{A+4}, v{A+5}
    v_mul_f32 v{A}, {f2h(1/640)}, v{A}
    v_mul_f32 v{A+4}, {f2h(1/640)}, v{A+4}
    v_fma_f32 v{A+4}, -v{A}, v{A}, v{A+4}
    v_max_f32 v{A+4}, 0, v{A+4}
    v_add_f32 v{A+4}, {f2h(1e-5)}, v{A+4}
    v_rsq_f32 v{A+4}, v{A+4}
    v_mul_f32 v{A}, v{A}, v{A+4}
    v_mov_b32 v{A+5}, v{A+4}
    v_sub_f32 v{A}, 0, v{A}
    v_mov_b32 v{A+1}, v{A}""")
    for it in range(5):
        o = UF + 4 * it
        for h in (0, 2):
            S(f"v_pk_fma_f32 {v(QF+4*it+h,2)}, {v(QF+4*it+h,2)}, {v(A+4,2)}, {v(A,2)}")
        S(f"""v_mov_b32 v{o}, v{QR+2*it}
        v_mov_b32 v{o+1}, v{QR+2*it+1}
        v_cvt_pk_bf16_f32 v{o+2}, v{QF+4*it}, v{QF+4*it+1}
        v_cvt_pk_bf16_f32 v{o+3}, v{QF+4*it+2}, v{QF+4*it+3}""")
        if it < 4:
            S(f"buffer_store_dwordx4 {v(o,4)}, v{vQZO}, {R(R_WS)}, 0 offen offset:{1024*it} sc1", tag="QZ")
        else:
            S(f"v_add_u32 v{vQZO}, 4096, v{vQZO}")
            S(f"buffer_store_dwordx4 {v(o,4)}, v{vQZO}, {R(R_WS)}, 0 offen sc1", tag="QZ")


def f2h(x):
    import struct
    return hex(struct.unpack("<I", struct.pack("<f", x))[0])


def line_xr(S, sd, base):
    S(f"""s_lshl_b32 s{sd}, s{sX}, 2
    s_lshr_b32 s{sd+1}, s{sR}, 3
    s_add_u32 s{sd}, s{sd}, s{sd+1}
    s_lshl_b32 s{sd}, s{sd}, 7
    s_add_u32 s{sd}, s{sd}, {CNT + base*128}""")


WD, WG, WU = ROLE, ROLE + 32, ROLE + 64
vWL = 67
LDS_WD = 1024
LDS_WDA = LDS_WD + 256 * 128
LDS_W1R = LDS_WDA + 1024
LDS_W1 = 36864


def w_loads(S):
    t = KF + 8
    srd(S, R_E, P_WD, 1728 * 1280)
    S(f"""s_mul_i32 s80, s{sX}, 10
    s_add_u32 s80, s80, s{sR}
    s_sub_u32 s80, s80, 22
    s_mul_i32 s80, s80, 216
    v_add_u32 v{t}, s80, v0
    s_mov_b32 s81, 52429
    v_mul_lo_u32 v{t+1}, v{t}, s81
    v_lshrrev_b32 v{t+1}, 22, v{t+1}
    v_mul_u32_u24 v{t+2}, 80, v{t+1}
    v_sub_u32 v{t+2}, v{t}, v{t+2}
    v_mul_u32_u24 v{t+3}, 9363, v{t+1}
    v_lshrrev_b32 v{t+3}, 16, v{t+3}
    v_mul_u32_u24 v{t+3}, 7, v{t+3}
    v_sub_u32 v{t+3}, v{t+1}, v{t+3}
    v_cmp_gt_u32 vcc, 168, v{t+1}
    v_and_b32 v{t+4}, 1, v{t+1}
    v_cndmask_b32 v{t+3}, v{t+4}, v{t+3}, vcc
    v_and_b32 v{t+4}, 1, v{t+3}
    v_cmp_eq_u32 vcc, 6, v{t+3}""")
    S(f"""v_lshlrev_b32 v{t+5}, 3, v{t+1}
    v_lshlrev_b32 v{t+4}, 2, v{t+4}
    v_sub_u32 v{t+5}, v{t+5}, v{t+4}
    v_mul_u32_u24 v{t+5}, 1280, v{t+5}
    v_lshl_add_u32 v{t+5}, v{t+2}, 4, v{t+5}
    v_mov_b32 v{t+6}, {8*1280}
    v_mov_b32 v{t+7}, {2*1280}
    v_cndmask_b32 v{t+8}, v{t+6}, v{t+7}, vcc
    v_mov_b32 v{t+6}, {4*1280}
    v_cndmask_b32 v{t+9}, v{t+7}, v{t+6}, vcc
    v_mov_b32 v{t+6}, {10*1280}
    v_mov_b32 v{t+7}, {6*1280}
    v_cndmask_b32 v{t+10}, v{t+6}, v{t+7}, vcc
    v_cmp_gt_u32 vcc, 216, v0
    v_mov_b32 v{t+6}, {OOB:#x}
    v_cndmask_b32 v{t+5}, v{t+6}, v{t+5}, vcc
    v_add_u32 v{t+8}, v{t+5}, v{t+8}
    v_add_u32 v{t+9}, v{t+5}, v{t+9}
    v_add_u32 v{t+10}, v{t+5}, v{t+10}""")
    for e, ad in enumerate((t + 5, t + 8, t + 9, t + 10)):
        S(f"buffer_load_dwordx4 {v(WD+8*e,4)}, v{ad}, {R(R_E)}, 0 offen")
        S(f"buffer_load_dwordx4 {v(WD+8*e+4,4)}, v{ad}, {R(R_E)}, 0 offen offset:1280")
    S(f"""v_mul_u32_u24 v{t+3}, 205, v{t+2}
    v_lshrrev_b32 v{t+3}, 11, v{t+3}
    v_mul_u32_u24 v{t+4}, 10, v{t+3}
    v_sub_u32 v{t+4}, v{t+2}, v{t+4}
    v_mul_u32_u24 v{t+3}, 54, v{t+3}
    v_lshrrev_b32 v{t+7}, 2, v{t+1}
    v_add_u32 v{t+3}, v{t+3}, v{t+7}
    v_mul_u32_u24 v{t+3}, 5, v{t+3}
    v_lshrrev_b32 v{t+7}, 1, v{t+4}
    v_add_u32 v{t+3}, v{t+3}, v{t+7}
    v_lshlrev_b32 v{t+3}, 10, v{t+3}
    v_and_b32 v{t+7}, 3, v{t+1}
    v_lshl_add_u32 v{t+3}, v{t+7}, 8, v{t+3}
    v_and_b32 v{t+7}, 1, v{t+4}
    v_lshl_add_u32 v{t+3}, v{t+7}, 7, v{t+3}
    v_add_u32 v{t+3}, {WDP:#x}, v{t+3}
    v_cndmask_b32 v{vWL}, v{t+6}, v{t+3}, vcc""")
    srd(S, R_A, P_WG, 640 * 3456)
    srd(S, R_B, P_WU, 640 * 3456)
    S(f"""v_lshrrev_b32 v{t}, 4, v0
    v_mul_u32_u24 v{t+1}, 52, v{t}
    v_lshrrev_b32 v{t+1}, 8, v{t+1}
    v_mul_u32_u24 v{t+2}, 80, v{t+1}
    v_sub_u32 v{t+2}, v0, v{t+2}
    s_mul_i32 s80, s{sX}, 27
    s_mul_i32 s81, s{sR}, 3
    s_add_u32 s80, s80, s81
    s_sub_u32 s80, s80, 66
    s_lshl_b32 s80, s80, 4
    v_mul_u32_u24 v{t+3}, {8*3456}, v{t+2}
    v_lshl_add_u32 v{t+3}, v{t+1}, 4, v{t+3}
    v_add_u32 v{t+3}, s80, v{t+3}
    s_cmp_lt_u32 s{sR}, 31
    s_cselect_b32 s81, 240, 0
    v_cmp_gt_u32 vcc, s81, v0
    v_cndmask_b32 v{t+3}, v{t+6}, v{t+3}, vcc
    s_movk_i32 s82, 6912
    s_movk_i32 s83, {2*6912}
    s_movk_i32 s84, {3*6912}""")
    for i in range(8):
        so = "0" if i < 2 else f"s{81 + (i>>1)}"
        S(f"buffer_load_dwordx4 {v(WG+4*i,4)}, v{t+3}, {R(R_A)}, {so} offen offset:{3456*(i&1)}")
        S(f"buffer_load_dwordx4 {v(WU+4*i,4)}, v{t+3}, {R(R_B)}, {so} offen offset:{3456*(i&1)}")
    return 8 + 16


def wd_prep(S):
    O = KF
    t = KF + 32
    S(f"""s_mov_b32 s80, 0x05040100
    s_mov_b32 s81, 0x07060302
    v_and_b32 v{t}, 7, v0
    v_lshlrev_b32 v{t+1}, 7, v0
    v_lshlrev_b32 v{t+2}, 2, v0
    ds_write_b32 v{t+2}, v{vWL} offset:{LDS_WDA}""")
    for d in range(8):
        for e2 in range(4):
            S(f"v_perm_b32 v{O+4*d+e2}, v{WD+4*(2*e2+1)+(d>>1)}, v{WD+4*(2*e2)+(d>>1)}, s{80+(d&1)}")
        S(f"v_xor_b32 v{t+3}, {d}, v{t}")
        S(f"v_lshl_add_u32 v{t+3}, v{t+3}, 4, v{t+1}")
        S(f"ds_write_b128 v{t+3}, {v(O+4*d,4)} offset:{LDS_WD}")
    S("s_waitcnt lgkmcnt(0)\ns_barrier")
    S(f"""v_lshrrev_b32 v{t+1}, 3, v0
    v_and_b32 v{t+2}, 7, v{t+1}
    v_xor_b32 v{t+2}, v{t+2}, v{t}
    v_lshlrev_b32 v{t+2}, 4, v{t+2}
    v_lshl_add_u32 v{t+2}, v{t+1}, 7, v{t+2}
    v_lshlrev_b32 v{t+1}, 2, v{t+1}
    v_lshlrev_b32 v{t}, 4, v{t}""")
    for it in range(7):
        S(f"ds_read_b32 v{t+4+it}, v{t+1} offset:{LDS_WDA + 128*it}")
        S(f"ds_read_b128 {v(O+4*it,4)}, v{t+2} offset:{LDS_WD + 4096*it}")
    for it in range(7):
        S(f"v_add_u32 v{t+4+it}, v{t+4+it}, v{t}")
        S(f"buffer_store_dwordx4 {v(O+4*it,4)}, v{t+4+it}, {R(R_WS)}, 0 offen sc1", tag="WD")


def w1_prep(S):
    F = KF
    T = KF + 16
    t = KF + 40
    O = UF
    for m, W in enumerate((WG, WU)):
        for p in range(4):
            for i in range(8):
                cvt_lo(S, T + 2 * i, W + 4 * i + p)
                cvt_hi(S, T + 2 * i + 1, W + 4 * i + p)
            S(f"v_pk_add_f32 {v(F+8*m+2*p,2)}, {v(T,2)}, {v(T+2,2)}")
            for i in range(2, 8):
                S(f"v_pk_add_f32 {v(F+8*m+2*p,2)}, {v(F+8*m+2*p,2)}, {v(T+2*i,2)}")
    for sh in (1, 2, 4, 8):
        for c in range(16):
            S(f"v_add_f32_dpp v{F+c}, v{F+c}, v{F+c} row_ror:{sh} row_mask:0xf bank_mask:0xf")
    S(f"""v_lshrrev_b32 v{t}, 4, v0
    v_lshlrev_b32 v{t+1}, 6, v{t}""")
    for c in range(4):
        S(f"ds_write_b128 v{t+1}, {v(F+4*c,4)} offset:{LDS_W1R + 16*c}")
    S(f"""s_waitcnt lgkmcnt(0)
    s_barrier
    v_mul_u32_u24 v{t+1}, 52, v{t}
    v_lshrrev_b32 v{t+1}, 8, v{t+1}
    v_min_u32 v{t+1}, 2, v{t+1}
    v_mul_u32_u24 v{t+1}, 320, v{t+1}""")
    for c in range(4):
        S(f"ds_read_b128 {v(F+4*c,4)}, v{t+1} offset:{LDS_W1R + 16*c}")
    for rr in range(1, 5):
        for c in range(4):
            S(f"ds_read_b128 {v(T+4*c,4)}, v{t+1} offset:{LDS_W1R + 64*rr + 16*c}")
        for c in range(8):
            S(f"v_pk_add_f32 {v(F+2*c,2)}, {v(F+2*c,2)}, {v(T+2*c,2)}")
    for c in range(16):
        S(f"v_mul_f32 v{F+c}, {f2h(-1/640)}, v{F+c}")
    S(f"""v_lshlrev_b32 v{t+2}, 8, v0
    v_and_b32 v{t+3}, 15, v0
    v_cmp_gt_u32 vcc, 240, v0
    s_and_saveexec_b64 s[82:83], vcc""")
    for m, W in enumerate((WG, WU)):
        for p in range(4):
            for i in range(8):
                cvt_lo(S, T + 2 * i, W + 4 * i + p)
                cvt_hi(S, T + 2 * i + 1, W + 4 * i + p)
                S(f"v_pk_add_f32 {v(T+2*i,2)}, {v(T+2*i,2)}, {v(F+8*m+2*p,2)}")
            for h in range(2):
                o = O + 4 * ((2 * p + h) & 7)
                for e2 in range(4):
                    S(f"v_cvt_pk_bf16_f32 v{o+e2}, v{T+4*e2+h}, v{T+4*e2+2+h}")
                j = 4 * p + h + 2 * m
                S(f"v_xor_b32 v{t+4}, {j}, v{t+3}")
                S(f"v_lshl_add_u32 v{t+4}, v{t+4}, 4, v{t+2}")
                S(f"ds_write_b128 v{t+4}, {v(o,4)} offset:{LDS_W1}")
    S(f"""s_mov_b64 exec, s[82:83]
    s_waitcnt lgkmcnt(0)
    s_barrier
    v_and_b32 v{t+4}, 15, v{t}
    v_xor_b32 v{t+4}, v{t+4}, v{t+3}
    v_lshlrev_b32 v{t+4}, 4, v{t+4}
    v_lshl_add_u32 v{t+4}, v{t}, 8, v{t+4}
    v_add_u32 v{t+4}, {LDS_W1}, v{t+4}
    s_mul_i32 s80, s{sX}, 27
    s_mul_i32 s81, s{sR}, 3
    s_add_u32 s80, s80, s81
    s_sub_u32 s80, s80, 66
    s_mul_i32 s80, s80, 20480
    s_add_u32 s80, s80, {W1P:#x}
    v_lshl_add_u32 v{t+5}, v0, 4, s80""")
    B = ROLE
    for it in range(15):
        S(f"ds_read_b128 {v(B+4*it,4)}, v{t+4} offset:{4096*it}")
    for it in range(15):
        so = "0" if it < 2 else f"s{sKS + (it>>1)}"
        if it == 1:
            S(f"v_add_u32 v{t+6}, 4096, v{t+5}")
        S(f"buffer_store_dwordx4 {v(B+4*it,4)}, v{t+5+(it&1)}, {R(R_WS)}, {so} offen sc1", tag="W1")
```

```python
import sys
from common import *
import prep, conv
from prep import vT0, vT1, vL

REF = "interleave_layers__ssm_conv_h3__geglu_ffn__prompt.s.ref"
FTR = """L_end:
s_endpgm
.section .rodata,"a"
.p2align 6
.amdhsa_kernel %s
  .amdhsa_next_free_vgpr 512
  .amdhsa_next_free_sgpr 102
  .amdhsa_accum_offset 256
  .amdhsa_group_segment_fixed_size 0
  .amdhsa_kernarg_size 104
  .amdhsa_user_sgpr_count 2
  .amdhsa_user_sgpr_kernarg_segment_ptr 1
  .amdhsa_system_sgpr_workgroup_id_x 1
.end_amdhsa_kernel
""" % KN


def header():
    out = []
    for line in open(REF):
        if line.startswith("; @launch"):
            line = "; @launch grid=(256,1,1) block=(256,1,1) lds=163840\n"
        out.append(line)
        if line.startswith(KN + ":"):
            break
    return "".join(out)


def stop_at(S, name):
    if Cfg.stop == name:
        S.drain()
        S("s_waitcnt vmcnt(0) lgkmcnt(0)\ns_branch L_end")


def sync_signal(S, sline):
    S("s_barrier")
    signal(S, sline, vT0, vT1)


def front(S):
    prep.prologue(S)
    prep.zero_flags(S)
    stamp(S, 0, vT0, vT1)
    S(f"s_cmp_ge_u32 s{sR}, 22\ns_cbranch_scc1 L_prep")
    prep.kv_addr(S)
    n = prep.kv_loads(S)
    n += prep.q_loads(S)
    n += conv.h_loads(S)
    n += conv.d_load(S)
    prep.ready_flag(S, n)
    prep.kv_compute(S)
    prep.q_stats(S)
    S.wait_tag("U")
    S.wait_ds()
    S("s_barrier")
    prep.arrive_first(S, L_U, prep.KF + 40)
    stamp(S, 1, vT0, prep.KF + 40)
    prep.q_finish(S)
    S(f"s_cmp_ge_u32 s{sR}, 20\ns_cbranch_scc1 L_kvonly")
    conv.h_build(S)
    S.wait_tag("QZ")
    S.wait_ds()
    prep.line_xr(S, 80, L_QZ)
    sync_signal(S, 80)
    stamp(S, 2, vT0, vT1)
    S(f"s_lshl_b32 s80, s{sX}, 9\ns_add_u32 s80, s80, {CNT + L_U*128}")
    conv.wave0_poll(S, 80, 3, f"""v_mov_b32 v{conv.EP+1}, 8
    v_cmp_eq_u32 s[82:83], 2, v{vL}
    v_cndmask_b32 v{conv.EP+1}, v{conv.EP+1}, 6, s[82:83]""", conv.EP)
    stamp(S, 3, vT0, vT1)
    conv.u_dma(S)
    fs = conv.FragSched(27, 24)
    S.wait_tag("U2")
    stamp(S, 4, vT0, vT1)
    fs.emit(S, 0, fs.n0 - 30, fence=fs.n0)
    S.wait_tag("U0")
    fs.emit(S, fs.n0 - 30, fs.n0)
    for p in range(2):
        if p == 1:
            fs.emit(S, fs.n0, len(fs.seq))
        stamp(S, 5 + 2 * p, vT0, vT1)
        if p == 0:
            S(f"s_mov_b32 s80, {CNT + L_QZ*128}")
            conv.wave0_poll(S, 80, 32, f"v_mov_b32 v{conv.EP+1}, 8", conv.EP)
        conv.qz_loads(S, p)
        conv.y_stage(S, p)
        S.wait_ds()
        S("s_barrier")
        conv.x1_out(S, p)
        S.wait_tag("X1")
        conv.x1_line(S, p, 80)
        sync_signal(S, 80)
        stamp(S, 6 + 2 * p, vT0, vT1)
    S.drain()
    S("s_branch L_ffn")
    S("L_kvonly:")
    S.reset()
    S("s_waitcnt vmcnt(0) lgkmcnt(0)")
    prep.line_xr(S, 80, L_QZ)
    sync_signal(S, 80)
    S("s_branch L_ffn")
    S("L_prep:")
    S.reset()
    prep.q_loads(S)
    prep.ready_load(S)
    prep.w_loads(S)
    prep.q_stats(S)
    S.wait_ds()
    S("s_barrier")
    prep.q_finish(S)
    S.wait_tag("QZ")
    S("s_barrier")
    prep.arrive_first(S, L_QZ, prep.KF + 40)
    stamp(S, 2, vT0, vT1)
    prep.wd_prep(S)
    S.wait_tag("WD")
    S(f"s_lshl_b32 s80, s{sX}, 7\ns_add_u32 s80, s80, {CNT + L_WD*128}")
    sync_signal(S, 80)
    stamp(S, 3, vT0, vT1)
    S.drain()
    S(f"s_cmp_ge_u32 s{sR}, 31\ns_cbranch_scc1 L_ffn")
    prep.w1_prep(S)
    S.wait_tag("W1")
    S(f"s_lshl_b32 s80, s{sX}, 7\ns_add_u32 s80, s80, {CNT + L_W1*128}")
    sync_signal(S, 80)
    stamp(S, 4, vT0, vT1)
    S.drain()
    S("L_ffn:")
    S.reset()
    stop_at(S, "front")


def build():
    S = Stream()
    front(S)
    if Cfg.stop != "front":
        import ffn
        ffn.ffn(S, stop_at)
    S.drain()
    text, L = finalize(S)
    return header() + text + FTR, L


if __name__ == "__main__":
    import argparse
    ap = argparse.ArgumentParser()
    ap.add_argument("-o", default="k.s")
    ap.add_argument("--ts", action="store_true")
    ap.add_argument("--stop")
    A = ap.parse_args()
    Cfg.ts, Cfg.stop = A.ts, A.stop
    t, L = build()
    open(A.o, "w").write(t)
    from collections import Counter
    print(Counter(i.kind for i in L))
```

```python
from asmlib import Stream, interleave, finalize

KN = "interleave_layers__ssm_conv_h3__geglu_ffn__prompt_kernel"

CNT = 0
L_U, L_QZ, L_WD, L_W1, L_X1, L_H, L_X3, L_END = 0, 32, 64, 72, 80, 128, 256, 320
TS = 0x00080000
U_ = 0x00100000
QZ = 0x00400000
W1P = 0x00A00000
WDP = 0x00F00000
X1 = 0x01200000
YY = 0x01500000
X3 = 0x01800000
H1 = 0x01B00000
H2 = 0x02200000
ST1 = 0x02A00000
ST2 = 0x02A80000
ST3 = 0x02B00000
XSUB = 160 * 1024
HSUB = 448 * 1024
OOB = 0x80000000

P_Q, P_K, P_V, P_SH, P_H, P_D, P_BX, P_WG, P_WU, P_WD, P_OUT, P_DBG, P_WS = range(4, 30, 2)
sX, sR, sW, sB = 30, 31, 32, 33
sBOUND = 34
sT0 = 35
R_WS = 36
R_A, R_B, R_C, R_D, R_E = 40, 44, 48, 52, 56
sKS = 60
sS1, sR1 = 90, 91
sTMP = 80
R_DBG = 96

SPIN = 1 << 20


def srd(S, r, p, size, add=None):
    if add is None:
        S(f"s_mov_b32 s{r}, s{p}\ns_mov_b32 s{r+1}, s{p+1}")
    else:
        S(f"s_add_u32 s{r}, s{p}, {add}\ns_addc_u32 s{r+1}, s{p+1}, 0")
    S(f"s_mov_b32 s{r+2}, {size:#x}\ns_mov_b32 s{r+3}, 0x00020000")


def R(r):
    return f"s[{r}:{r+3}]"


def v(a, n=1):
    return f"v{a}" if n == 1 else f"v[{a}:{a+n-1}]"


def a(i, n=1):
    return f"a{i}" if n == 1 else f"a[{i}:{i+n-1}]"


_uid = [0]


def lab(p):
    _uid[0] += 1
    return f"L_{p}_{_uid[0]}"


class Cfg:
    ts = False
    tsr = 150
    stop = None


TSN = {}


def stamp(S, name):
    if not Cfg.ts:
        return
    if name == "start":
        idx, op = 0, "s_memtime"
        S(f"v_mov_b32 v{Cfg.tsr}, -1")
        stamp(S, "rt0")
    elif name in ("rt0", "rt1"):
        idx, op = (63 if name == "rt0" else 62), "s_memrealtime"
    else:
        idx, op = TSN.setdefault(name, len(TSN) + 1), "s_memtime"
        assert idx < 62
    S(f"""{op} s[92:93]
    s_waitcnt lgkmcnt(0)
    v_writelane_b32 v{Cfg.tsr}, s92, {idx}""")


def ts_move(S, new):
    if Cfg.ts and new != Cfg.tsr:
        S(f"v_mov_b32 v{new}, v{Cfg.tsr}")
    Cfg.tsr = new


def ts_flush(S, vt):
    if not Cfg.ts:
        return
    stamp(S, "end")
    stamp(S, "rt1")
    S(f"""s_lshl_b32 s94, s2, 2
    s_add_u32 s94, s94, s{sW}
    s_lshl_b32 s94, s94, 8
    s_add_u32 s94, s94, {TS:#x}
    v_lshl_add_u32 v{vt}, v1, 2, s94
    buffer_store_dword v{Cfg.tsr}, v{vt}, {R(R_WS)}, 0 offen
    s_waitcnt vmcnt(0)""")


def poll(S, voff, vtgt, vtmp):
    l, d = lab("poll"), lab("pdone")
    S.drain()
    S(f"""s_mov_b32 s{sBOUND}, {SPIN}
    {l}:
    buffer_load_dword v{vtmp}, v{voff}, {R(R_WS)}, 0 offen sc1
    s_waitcnt vmcnt(0)
    v_cmp_gt_u32 vcc, v{vtgt}, v{vtmp}
    s_cbranch_vccz {d}
    s_sub_u32 s{sBOUND}, s{sBOUND}, 1
    s_cbranch_scc0 {l}
    s_branch L_end
    {d}:""")


def signal(S, sline_expr_sgpr, vt0, vt1):
    S.push()
    S(f"""v_mov_b32 v{vt0}, s{sline_expr_sgpr}
    v_mov_b32 v{vt1}, 1
    s_cmp_eq_u32 s{sW}, 0
    s_cselect_b32 exec_lo, 1, 0
    s_mov_b32 exec_hi, 0
    buffer_atomic_add v{vt1}, v{vt0}, {R(R_WS)}, 0 offen sc1
    s_mov_b64 exec, -1""")
    S.pop()
```

```python
import math
from common import *
from prep import vL, f2h, cvt_lo, cvt_hi
from conv import wave0_poll

vXB, vHB, vHB2 = 2, 3, 4
vA0 = 5
vHS, vHS7 = 8, 9
vXO, vOUT = 10, 11
vS1, vS2 = 12, 13
vL16, vT = 14, 15
ACCS = (16, 72)
BP, NB = 128, 6
AP, NA = 176, 6
ET = 200
CO = ET
EO = ET + 8
E1 = ET + 12
WDV = 232
LW1 = 20480
s4K = sB
R_X, R_H, R_Y, R_O = R_A, R_B, R_C, R_D

KAPPA = math.sqrt(2 / math.pi)
K1 = -2 * KAPPA * math.log2(math.e)


def ws_srd(S, r, const, mul_x, size, sset=sX):
    S(f"s_mul_i32 s80, s{sset}, {mul_x:#x}\ns_add_u32 s80, s80, {const:#x}")
    srd(S, r, P_WS, size, add="s80")


def setup(S):
    n, g, t = ET, ET + 1, ET + 2
    S(f"""s_movk_i32 s{s4K}, 4096
    s_mul_i32 s85, s{sR1}, 7
    s_mul_i32 s80, s{sR1}, 6
    s_add_u32 s80, s80, 24
    s_min_u32 s85, s85, s80
    s_lshr_b32 s86, s{sR}, 3
    s_and_b32 s87, s{sR}, 7
    v_and_b32 v{n}, 15, v{vL}
    v_lshrrev_b32 v{g}, 4, v{vL}
    v_lshlrev_b32 v{vL16}, 4, v{vL}
    v_lshlrev_b32 v{n}, 4, v{n}
    v_lshl_add_u32 v{t}, v{g}, 11, v{n}
    s_lshl_b32 s80, s{sW}, 8
    v_add_u32 v{vXB}, s80, v{t}
    s_mul_i32 s81, s{sW}, {14*8192}
    s_lshl_b32 s82, s86, 8
    s_add_u32 s81, s81, s82
    v_add_u32 v{vHB}, s81, v{t}
    s_cmp_eq_u32 s{sW}, 3
    s_cselect_b32 s81, {OOB:#x}, 0
    v_or_b32 v{vHB2}, s81, v{vHB}
    v_add_u32 v{vA0}, {LW1}, v{vL16}
    v_add_u32 v{vA0+1}, {LW1 + 9*7168}, v{vL16}
    v_add_u32 v{vA0+2}, {LW1 + 18*7168}, v{vL16}
    s_lshl_b32 s81, s85, 11
    s_add_u32 s81, s81, s80
    v_lshl_add_u32 v{t}, v{g}, 10, v{n}
    v_add_u32 v{vHS}, s81, v{t}
    s_add_u32 s81, s81, {12*1024}
    s_cmp_lt_u32 s{sR1}, 24
    s_cselect_b32 s81, s81, {OOB:#x}
    v_lshrrev_b32 v{t+1}, 1, v{g}
    v_and_b32 v{t+2}, 1, v{g}
    v_lshl_add_u32 v{vHS7}, v{t+1}, 10, v{n}
    v_lshl_add_u32 v{vHS7}, v{t+2}, 3, v{vHS7}
    v_add_u32 v{vHS7}, s81, v{vHS7}""")
    S(f"""s_lshl_b32 s81, s{sW}, 2
    s_lshr_b32 s88, 0x4230, s81
    s_and_b32 s88, s88, 15
    s_mul_i32 s81, s87, 20
    s_lshl_b32 s83, s88, 2
    s_add_u32 s81, s81, s83
    s_lshl_b32 s83, s81, 10
    s_add_u32 s83, s83, s82
    v_add_u32 v{vXO}, s83, v{t}
    s_lshl_b32 s81, s81, 3
    s_lshl_b32 s83, s{sX}, 2
    s_add_u32 s83, s83, s86
    s_mul_i32 s83, s83, {32*1280}
    s_add_u32 s81, s81, s83
    v_mul_u32_u24 v{vOUT}, 160, v{n}
    v_mul_u32_u24 v{t+2}, 1280, v{t+2}
    v_lshl_add_u32 v{t+2}, v{t+1}, 4, v{t+2}
    v_add3_u32 v{vOUT}, v{vOUT}, v{t+2}, s81
    s_lshl_b32 s81, s{sS1}, 12
    s_add_u32 s81, s81, s80
    s_add_u32 s81, s81, {ST1:#x}
    v_add_u32 v{vS1}, s81, v{n}
    s_lshl_b32 s81, s{sX}, 14
    s_lshl_b32 s83, s86, 11
    s_add_u32 s81, s81, s83
    s_add_u32 s81, s81, {ST2:#x}
    v_lshl_add_u32 v{vS2}, v{g}, 9, v{n}
    v_add_u32 v{vS2}, s81, v{vS2}""")


def w1_dma(S, ms=range(5)):
    t = vT
    S(f"""s_mul_i32 s80, s85, 20480
    s_lshl_b32 s81, s{sW}, 10
    s_add_u32 s80, s80, s81
    s_add_u32 s80, s80, {W1P:#x}
    v_add_u32 v{t}, s80, v{vL16}
    s_mul_i32 s81, s{sW}, 7168""")
    for m in ms:
        for i in range(7):
            S(f"""s_add_u32 m0, s81, {LW1 + 4*m*7168 + i*1024}
            s_mov_b32 s80, {i*20480 + m*4096}
            buffer_load_dwordx4 v{t}, {R(R_WS)}, s80 offen sc1 lds""", tag="W1L")


def wd_reg(q):
    return a(4 * q, 4) if q < 64 else v(WDV + 4 * (q - 64), 4)


def wd_load(S, t):
    S(f"""s_mul_i32 s80, s87, {54*5120}
    s_mul_i32 s81, s{sW}, {14*5120}
    s_add_u32 s80, s80, s81
    s_add_u32 s80, s80, {WDP:#x}
    v_add_u32 v{t}, s80, v{vL16}
    v_add_u32 v{t+1}, 4096, v{t}
    s_cmp_eq_u32 s{sW}, 3
    s_cselect_b32 s81, {OOB:#x}, 0
    v_or_b32 v{t+2}, s81, v{t}
    v_or_b32 v{t+3}, s81, v{t+1}""")
    for q in range(70):
        ad = t + ((q >> 2) & 1) + (2 if q >= 60 else 0)
        so = f"s{sKS + (q>>3)}"
        S(f"buffer_load_dwordx4 {wd_reg(q)}, v{ad}, {R(R_WS)}, {so} offen offset:{1024*(q&3)} sc1")


def wave_poll(S, sline, tgt, t):
    S(f"v_mov_b32 v{t}, s{sline}\nv_mov_b32 v{t+1}, {tgt}")
    poll(S, t, t + 1, t + 2)


def st1_task(S, sub, t):
    S(f"""s_lshr_b32 s80, s{sW}, 1
    s_mul_i32 s81, s80, {80*1024}
    s_and_b32 s82, s{sW}, 1
    s_lshl_b32 s82, s82, 4
    s_lshl_b32 s83, s{sR1}, 5
    s_add_u32 s82, s82, s83
    s_add_u32 s81, s81, s82
    v_lshl_add_u32 v{t+8}, v{vL}, 10, s81
    v_add_u32 v{t+9}, 65536, v{t+8}
    v_cmp_gt_u32 vcc, 16, v{vL}
    v_mov_b32 v{t+10}, {OOB:#x}
    v_cndmask_b32 v{t+9}, v{t+10}, v{t+9}, vcc
    buffer_load_dwordx4 {v(t,4)}, v{t+8}, {R(R_X)}, 0 offen sc1
    buffer_load_dwordx4 {v(t+4,4)}, v{t+9}, {R(R_X)}, 0 offen sc1
    s_lshl_b32 s80, s80, 10
    s_add_u32 s80, s80, s82
    s_lshl_b32 s81, s{sS1}, 12
    s_add_u32 s80, s80, s81
    s_add_u32 s89, s80, {ST1 + sub*2048:#x}""")


def st1_finish(S, t):
    A = t + 8
    S("s_mov_b32 s81, 0x3f803f80")
    for e in range(2):
        for j, r_ in enumerate((t + 2 * e, t + 2 * e + 1, t + 4 + 2 * e, t + 5 + 2 * e)):
            c0 = "0" if j == 0 else f"v{A+2*e}"
            c1 = "0" if j == 0 else f"v{A+2*e+1}"
            S(f"v_dot2_f32_bf16 v{A+2*e}, v{r_}, s81, {c0}")
            S(f"v_dot2_f32_bf16 v{A+2*e+1}, v{r_}, v{r_}, {c1}")
    rows_reduce(S, A)
    for sh in (1, 2, 4, 8):
        S(f"v_add_f32_dpp v{A}, v{A}, v{A} row_ror:{sh} row_mask:0xf bank_mask:0xf")
    S(f"""v_or_b32 v{A}, 1, v{A}
    v_lshrrev_b32 v{A+1}, 4, v{vL}
    v_lshl_add_u32 v{A+1}, v{A+1}, 2, s89
    v_and_b32 v{A+2}, 15, v{vL}
    v_cmp_eq_u32 vcc, 0, v{A+2}
    v_mov_b32 v{A+2}, {OOB:#x}
    v_cndmask_b32 v{A+1}, v{A+2}, v{A+1}, vcc
    buffer_store_dword v{A}, v{A+1}, {R(R_WS)}, 0 offen sc1""")


def rows_reduce(S, A):
    S(f"""v_permlane32_swap_b32 v{A}, v{A+2}
    v_permlane32_swap_b32 v{A+1}, v{A+3}
    v_add_f32 v{A}, v{A}, v{A+2}
    v_add_f32 v{A+1}, v{A+1}, v{A+3}
    v_permlane16_swap_b32 v{A}, v{A+1}
    v_add_f32 v{A}, v{A}, v{A+1}""")


def rows_gather(S, A):
    S(f"""v_mov_b32 v{A+1}, v{A}
    v_permlane16_swap_b32 v{A}, v{A+1}
    v_mov_b32 v{A+2}, v{A}
    v_mov_b32 v{A+3}, v{A+1}
    v_permlane32_swap_b32 v{A}, v{A+2}
    v_permlane32_swap_b32 v{A+1}, v{A+3}""")


def tagged_pair(S, t, vaddr, so, off0, off1):
    l, d = lab("tp"), lab("tpd")
    S.drain()
    S(f"""s_mov_b32 s{sBOUND}, {SPIN}
    {l}:
    buffer_load_dwordx4 {v(t,4)}, v{vaddr}, {R(R_WS)}, {so} offen offset:{off0} sc1
    buffer_load_dwordx4 {v(t+4,4)}, v{vaddr}, {R(R_WS)}, {so} offen offset:{off1} sc1
    s_waitcnt vmcnt(0)
    v_bitop3_b32 v{t+8}, v{t}, v{t+1}, v{t+2} bitop3:0x80
    v_bitop3_b32 v{t+9}, v{t+3}, v{t+4}, v{t+5} bitop3:0x80
    v_bitop3_b32 v{t+8}, v{t+8}, v{t+6}, v{t+7} bitop3:0x80
    v_bitop3_b32 v{t+8}, v{t+8}, v{t+9}, 1 bitop3:0x80
    v_cmp_eq_u32 vcc, 0, v{t+8}
    s_cbranch_vccz {d}
    s_sub_u32 s{sBOUND}, s{sBOUND}, 1
    s_cbranch_scc0 {l}
    s_branch L_end
    {d}:""")
    for i in range(4):
        S(f"v_add_f32 v{t+i}, v{t+i}, v{t+4+i}")


def mean_var(S, t):
    for e in (0, 2):
        S(f"v_mul_f32 v{t+e}, {f2h(1/640)}, v{t+e}\nv_mul_f32 v{t+e+1}, {f2h(1/640)}, v{t+e+1}")
    for e in (0, 2):
        S(f"v_fma_f32 v{t+e+1}, -v{t+e}, v{t+e}, v{t+e+1}")
    for e in (0, 2):
        S(f"v_max_f32 v{t+e+1}, 0, v{t+e+1}")
    for e in (0, 2):
        S(f"v_add_f32 v{t+e+1}, {f2h(1e-5)}, v{t+e+1}")


def gelu_coef(S, t):
    mean_var(S, t)
    for e in range(2):
        S(f"v_rsq_f32 v{t+2*e}, v{t+2*e+1}")
    for e in range(2):
        S(f"v_rcp_f32 v{CO+3*e+1}, v{t+2*e+1}")
    for e in range(2):
        S(f"v_mul_f32 v{CO+3*e}, {f2h(K1)}, v{t+2*e}\nv_mov_b32 v{CO+3*e+2}, v{t+2*e+1}")
    for e in range(2):
        S(f"v_mul_f32 v{CO+3*e+1}, {f2h(0.044715)}, v{CO+3*e+1}")
    for e in range(2):
        S(f"v_mul_f32 v{CO+3*e+1}, v{CO+3*e+1}, v{CO+3*e}")


def st3_loads(S, sub, t):
    S(f"""s_sub_u32 s80, s{sW}, s86
    s_lshl_b32 s80, s80, 11
    s_sub_u32 s81, s{sS1}, s{sX}
    s_lshl_b32 s81, s81, 14
    s_add_u32 s80, s80, s81
    s_add_u32 s80, s80, {ST3 - ST2 + sub*8192:#x}
    buffer_load_dwordx4 {v(t,4)}, v{vS2}, {R(R_WS)}, s80 offen sc1
    buffer_load_dwordx4 {v(t+4,4)}, v{vS2}, {R(R_WS)}, s80 offen offset:256 sc1""")


def st3_coef(S, t):
    for i in range(4):
        S(f"v_add_f32 v{t+i}, v{t+i}, v{t+4+i}")
    rows_reduce(S, t)
    rows_gather(S, t)
    gelu_coef(S, t)


def b_load(S, ks, vb, srd_):
    b = BP + 8 * (ks % NB)
    S(f"buffer_load_dwordx4 {v(b,4)}, v{vb}, {R(srd_)}, s{sKS+ks} offen sc1")
    S(f"buffer_load_dwordx4 {v(b+4,4)}, v{vb}, {R(srd_)}, s{sKS+ks} offen offset:1024 sc1")


def b_swap(S, ks):
    b = BP + 8 * (ks % NB)
    S(f"v_swap_b32 v{b+2}, v{b+4}\nv_swap_b32 v{b+3}, v{b+5}")


def a_read(S, f):
    ks, i = divmod(f, 7)
    S(f"ds_read_b128 {v(AP + 4*(f % NA), 4)}, v{vA0 + ks//9} offset:{(ks % 9)*7168 + i*1024}")


def g1_pre(S):
    for ks in range(NB - 1):
        b_load(S, ks, vXB, R_X)


def g1(S, acc):
    for f in range(NA - 1):
        a_read(S, f)
    b_swap(S, 0)
    for ks in range(20):
        b = BP + 8 * (ks % NB)
        for i in range(7):
            f = 7 * ks + i
            A = v(AP + 4 * (f % NA), 4)
            for tt in range(2):
                d = v(acc + 8 * i + 4 * tt, 4)
                S(f"v_mfma_f32_16x16x32_bf16 {d}, {A}, {v(b+4*tt,4)}, {d if ks else 0}")
                if tt == 0 and f + NA - 1 < 140:
                    a_read(S, f + NA - 1)
                if tt == 1:
                    if i == 0 and ks + NB - 1 < 20:
                        b_load(S, ks + NB - 1, vXB, R_X)
                    if i == 4 and ks + 1 < 20:
                        b_swap(S, ks + 1)


def epi(S, acc, pk=False):
    k = 0
    for i in range(7):
        for tt in range(2):
            c = acc + 8 * i + 4 * tt
            ca, cb, cc = CO + 3 * tt, CO + 3 * tt + 1, CO + 3 * tt + 2
            t = E1 + 2 * (k & 1)
            k += 1
            o = EO + 2 * tt + (i & 1) if i < 6 else EO + tt
            S(f"""v_mul_f32 v{t}, v{c}, v{c}
            v_mul_f32 v{t+1}, v{c+1}, v{c+1}
            v_fma_f32 v{t}, v{t}, v{cb}, v{ca}
            v_fma_f32 v{t+1}, v{t+1}, v{cb}, v{ca}
            v_mul_f32 v{t}, v{t}, v{c}
            v_mul_f32 v{t+1}, v{t+1}, v{c+1}
            v_exp_f32 v{t}, v{t}
            v_exp_f32 v{t+1}, v{t+1}
            v_mul_f32 v{c}, v{c}, v{c+2}
            v_mul_f32 v{c+1}, v{c+1}, v{c+3}
            v_fma_f32 v{t}, v{t}, v{cc}, v{cc}
            v_fma_f32 v{t+1}, v{t+1}, v{cc}, v{cc}
            v_rcp_f32 v{t}, v{t}
            v_rcp_f32 v{t+1}, v{t+1}
            v_mul_f32 v{c}, v{c}, v{t}
            v_mul_f32 v{c+1}, v{c+1}, v{t+1}
            v_cvt_pk_bf16_f32 v{o}, v{c}, v{c+1}""")
        if i & 1:
            so = ("0", f"s{s4K}", f"s{sKS+1}")[i >> 1]
            S(f"buffer_store_dwordx4 {v(EO,4)}, v{vHS}, {R(R_H)}, {so} offen sc1", tag="H")
    S(f"v_permlane16_swap_b32 v{EO}, v{EO+1}")
    S(f"buffer_store_dwordx2 {v(EO,2)}, v{vHS7}, {R(R_H)}, 0 offen sc1", tag="H")


def g2_pre(S):
    for ks in range(NB - 1):
        b_load(S, ks, vHB, R_H)


def g2(S, acc):
    b_swap(S, 0)
    for ks in range(14):
        b = BP + 8 * (ks % NB)
        for dt in range(5):
            for tt in range(2):
                d = v(acc + 8 * dt + 4 * tt, 4)
                S(f"v_mfma_f32_16x16x32_bf16 {d}, {wd_reg(5*ks+dt)}, {v(b+4*tt,4)}, {d if ks else 0}")
                if tt == 1:
                    kn = ks + NB - 1
                    if dt == 0 and kn < 14:
                        b_load(S, kn, vHB if kn < 12 else vHB2, R_H)
                    if dt == 3 and ks + 1 < 14:
                        b_swap(S, ks + 1)


def reduce4(S, acc, T):
    ad0, ad1 = vT, T + 24
    S(f"""s_lshr_b32 s80, s{sW}, 1
    s_mul_i32 s80, s80, 10240
    s_sub_u32 s81, 10240, s80
    v_add_u32 v{ad0}, s80, v{vL16}
    v_add_u32 v{ad1}, s81, v{vL16}""")
    done = lab("red")
    L = [lab("rw") for _ in range(4)]
    S.drain()
    S(f"""s_cmp_eq_u32 s{sW}, 1
    s_cbranch_scc1 {L[1]}
    s_cmp_eq_u32 s{sW}, 2
    s_cbranch_scc1 {L[2]}
    s_cmp_eq_u32 s{sW}, 3
    s_cbranch_scc1 {L[3]}""")
    plan = {0: (range(6, 10), range(0, 6), (4, 5), (0, 1, 2, 3)),
            1: (range(0, 6), range(6, 10), (8, 9), (6, 7)),
            2: (range(6, 10), range(0, 6), (0, 1, 2, 3), (4, 5)),
            3: (range(0, 6), range(6, 10), (6, 7), (8, 9))}
    for w in range(4):
        s1, k1, s2, k2 = plan[w]
        S(f"{L[w]}:\ns_nop 7")
        S.reset()
        for tl in s1:
            S(f"ds_write_b128 v{ad0}, {v(acc+4*tl,4)} offset:{1024*tl}")
        S("s_waitcnt lgkmcnt(0)\ns_barrier")
        order = list(s2) + list(k2)
        for j, tl in enumerate(order):
            S(f"ds_read_b128 {v(T+4*j,4)}, v{ad0} offset:{1024*tl}")
        for j, tl in enumerate(order):
            for h in (0, 2):
                S(f"v_pk_add_f32 {v(acc+4*tl+h,2)}, {v(acc+4*tl+h,2)}, {v(T+4*j+h,2)}")
            if tl in s2:
                S(f"ds_write_b128 v{ad0}, {v(acc+4*tl,4)} offset:{1024*tl}")
        S("s_waitcnt lgkmcnt(0)\ns_barrier")
        for j, tl in enumerate(k2):
            S(f"ds_read_b128 {v(T+4*j,4)}, v{ad1} offset:{1024*tl}")
        for j, tl in enumerate(k2):
            for h in (0, 2):
                S(f"v_pk_add_f32 {v(acc+4*j+h,2)}, {v(acc+4*tl+h,2)}, {v(T+4*j+h,2)}")
        if w > 0:
            for j in range(8, 16):
                S(f"v_mov_b32 v{acc+j}, 0")
        S.drain()
        if w < 3:
            S(f"s_branch {done}")
    S(f"{done}:")
    S.reset()


def own_loads(S, srd_, d):
    S(f"""s_cmp_eq_u32 s{sW}, 0
    s_cselect_b32 s80, s{s4K}, {OOB:#x}
    v_add_u32 v{vT}, s80, v{vXO}
    buffer_load_dwordx4 {v(d,4)}, v{vXO}, {R(srd_)}, 0 offen sc1
    buffer_load_dwordx4 {v(d+4,4)}, v{vT}, {R(srd_)}, 0 offen sc1""")


def add_resid(S, acc, d, t):
    for j in range(8):
        cvt_lo(S, t, d + j)
        cvt_hi(S, t + 1, d + j)
        S(f"v_pk_add_f32 {v(acc+2*j,2)}, {v(acc+2*j,2)}, {v(t,2)}")
        t ^= 2


def part_stats(S, acc, A, lds_off):
    for e in range(2):
        regs = [acc + 4 * e + j for j in range(4)] + [acc + 8 + 4 * e + j for j in range(4)]
        S(f"v_add_f32 v{A+2*e}, v{regs[0]}, v{regs[1]}\nv_mul_f32 v{A+2*e+1}, v{regs[0]}, v{regs[0]}")
        S(f"v_fmac_f32 v{A+2*e+1}, v{regs[1]}, v{regs[1]}")
        for r_ in regs[2:]:
            S(f"v_add_f32 v{A+2*e}, v{A+2*e}, v{r_}\nv_fmac_f32 v{A+2*e+1}, v{r_}, v{r_}")
    rows_reduce(S, A)
    S(f"""v_and_b32 v{A+1}, 0xf0, v{vL16}
    v_lshrrev_b32 v{A+2}, 4, v{vL}
    v_lshl_add_u32 v{A+1}, v{A+2}, 2, v{A+1}
    s_lshl_b32 s80, s{sW}, 8
    v_add_u32 v{A+1}, s80, v{A+1}
    ds_write_b32 v{A+1}, v{A} offset:{lds_off}""")


def stats_publish(S, T, lds_off, base, tag=None):
    d = lab("sp")
    S.push()
    S(f"""s_cmp_lg_u32 s{sW}, 0
    s_cbranch_scc1 {d}
    v_lshlrev_b32 v{T+4}, 2, v{vL}""")
    for j in range(4):
        S(f"ds_read_b32 v{T+j}, v{T+4} offset:{lds_off + 256*j}")
    S(f"""s_lshl_b32 s80, s{sX}, 14
    s_lshl_b32 s81, s{sR}, 8
    s_add_u32 s80, s80, s81
    s_add_u32 s80, s80, {base:#x}
    v_add_u32 v{T+4}, s80, v{T+4}
    v_add_f32 v{T}, v{T}, v{T+1}
    v_add_f32 v{T+2}, v{T+2}, v{T+3}
    v_add_f32 v{T}, v{T}, v{T+2}
    v_or_b32 v{T}, 1, v{T}
    buffer_store_dword v{T}, v{T+4}, {R(R_WS)}, 0 offen sc1
    {d}:""")
    S.pop()


def x3_compute(S, acc, yr, t):
    rows_reduce(S, t)
    rows_gather(S, t)
    mean_var(S, t)
    for e in (0, 2):
        S(f"v_rsq_f32 v{t+e+1}, v{t+e+1}")
    for e in (0, 2):
        S(f"v_mul_f32 v{t+e}, v{t+e}, v{t+e+1}")
    u = t + 4
    for j in range(8):
        e = 2 * ((j >> 1) & 1)
        cvt_lo(S, u, yr + j)
        cvt_hi(S, u + 1, yr + j)
        for h in range(2):
            S(f"v_fma_f32 v{u+2+h}, v{acc+2*j+h}, v{t+e+1}, -v{t+e}")
        for h in range(2):
            S(f"v_fmac_f32 v{acc+2*j+h}, v{u+2+h}, v{u+h}")
        S(f"v_cvt_pk_bf16_f32 v{yr+j}, v{acc+2*j}, v{acc+2*j+1}")


def line_h(S, sd, layer, sub, shard_sgpr, sset=sX):
    S(f"""s_lshl_b32 s{sd}, s{sset}, 3
    s_add_u32 s{sd}, s{sd}, s{shard_sgpr}
    s_lshl_b32 s{sd}, s{sd}, 7
    s_add_u32 s{sd}, s{sd}, {CNT + (L_H + 64*layer + 4*sub)*128}""")


def line_x3(S, sd, sub, tg_sgpr, sset=sX):
    S(f"""s_lshl_b32 s{sd}, s{sset}, 3
    s_add_u32 s{sd}, s{sd}, s{tg_sgpr}
    s_lshl_b32 s{sd}, s{sd}, 7
    s_add_u32 s{sd}, s{sd}, {CNT + (L_X3 + 4*sub)*128}""")


def ffn(S, stop_at):
    T = E1 + 4
    setup(S)
    stamp(S, "setup")
    S(f"s_mov_b32 s80, {CNT + L_WD*128}")
    wave0_poll(S, 80, 16, f"""v_mov_b32 v{T+1}, 10
    v_cmp_lt_u32 s[82:83], 7, v{vL}
    v_cndmask_b32 v{T+1}, v{T+1}, 9, s[82:83]""", T)
    w1_dma(S)
    wd_load(S, T)
    S.drain()
    S("s_barrier")
    stamp(S, "Wld")
    for layer in range(2):
        XB, HB_ = (X1, H1) if layer == 0 else (X3, H2)
        ts = 11 + 10 * layer
        for sub in range(2):
            acc = ACCS[sub]
            ws_srd(S, R_X, XB + sub * XSUB, 2 * XSUB, XSUB, sS1)
            ws_srd(S, R_H, HB_ + sub * HSUB, 2 * HSUB, HSUB, sS1)
            if layer == 0:
                S(f"s_mov_b32 s80, {CNT + (L_X1 + 16*sub)*128}")
                wave0_poll(S, 80, 16, f"v_mov_b32 v{T+1}, 10", T)
                st1_task(S, sub, T)
                g1_pre(S)
                st1_finish(S, T)
            else:
                line_x3(S, 80, sub, sW, sS1)
                wave_poll(S, 80, 8, T)
                st3_loads(S, sub, T)
                g1_pre(S)
                st3_coef(S, T)
            stamp(S, f"g1pre{layer}{sub}")
            g1(S, acc)
            stamp(S, f"g1_{layer}{sub}")
            if layer == 0:
                tagged_pair(S, T, vS1, "0", sub * 2048, sub * 2048 + 1024)
                gelu_coef(S, T)
            epi(S, acc)
            S.wait_tag("H")
            S(f"s_lshr_b32 s81, s{sR1}, 3")
            line_h(S, 80, layer, sub, 81, sS1)
            S("s_barrier")
            signal(S, 80, T, T + 1)
            stamp(S, f"epi{layer}{sub}")
        stop_at(S, f"g1_{layer}")
        for sub in range(2):
            acc = ACCS[sub]
            XR, YR = acc + 40, acc + 48
            ws_srd(S, R_H, HB_ + sub * HSUB, 2 * HSUB, HSUB)
            ws_srd(S, R_X, XB + sub * XSUB, 2 * XSUB, XSUB)
            line_h(S, 80, layer, sub, sW)
            wave_poll(S, 80, 8, T)
            stamp(S, f"Hpoll{layer}{sub}")
            g2_pre(S)
            own_loads(S, R_X, XR)
            if layer == 0:
                ws_srd(S, R_Y, YY + sub * XSUB, 2 * XSUB, XSUB)
                own_loads(S, R_Y, YR)
            g2(S, acc)
            stamp(S, f"g2_{layer}{sub}")
            reduce4(S, acc, BP)
            add_resid(S, acc, XR, T)
            stamp(S, f"red{layer}{sub}")
            if layer == 0:
                part_stats(S, acc, T, 0)
                S.wait_ds()
                S("s_barrier")
                stats_publish(S, T, 0, ST2 + sub * 8192)
                tagged_pair(S, T, vS2, "0" if sub == 0 else f"s{sKS+1}", 0, 256)
                x3_compute(S, acc, YR, T)
                ws_srd(S, R_O, X3 + sub * XSUB, 2 * XSUB, XSUB)
                S(f"""s_cmp_eq_u32 s{sW}, 0
                s_cselect_b32 s80, s{s4K}, {OOB:#x}
                v_add_u32 v{vT}, s80, v{vXO}
                buffer_store_dwordx4 {v(YR,4)}, v{vXO}, {R(R_O)}, 0 offen sc1
                buffer_store_dwordx4 {v(YR+4,4)}, v{vT}, {R(R_O)}, 0 offen sc1""")
                part_stats(S, acc, T, 2048)
                S.wait_ds()
                S("s_barrier")
                stats_publish(S, T, 2048, ST3 + sub * 8192)
                S("s_waitcnt vmcnt(0)")
                line_x3(S, 80, sub, 86)
                S("s_barrier")
                signal(S, 80, T, T + 1)
            else:
                srd(S, R_O, P_OUT, 2048 * 1280)
                for j in range(8):
                    S(f"v_cvt_pk_bf16_f32 v{XR+j}, v{acc+2*j}, v{acc+2*j+1}")
                for s_ in range(2):
                    S(f"v_permlane16_swap_b32 v{XR+4*s_}, v{XR+4*s_+2}\nv_permlane16_swap_b32 v{XR+4*s_+1}, v{XR+4*s_+3}")
                S(f"""s_cmp_eq_u32 s{sW}, 0
                s_cselect_b32 s80, 32, {OOB:#x}
                v_add_u32 v{vT}, s80, v{vOUT}
                s_mov_b32 s80, {sub*1024*1280}
                buffer_store_dwordx4 {v(XR,4)}, v{vOUT}, {R(R_O)}, s80 offen
                buffer_store_dwordx4 {v(XR+4,4)}, v{vT}, {R(R_O)}, s80 offen
                s_barrier""")
            stamp(S, f"fin{layer}{sub}")
        stop_at(S, f"g2_{layer}")
    S("s_waitcnt vmcnt(0)")
    ts_flush(S, E1)
```

```python
from common import *

vTID, vL = 0, 1
vKB, vKA, vSO, vQO, vUO, vQZO = 2, 3, 4, 5, 6, 7
vT0, vT1 = 8, 9
KR, VR, SR, QR = 10, 32, 48, 56
vRDY = 66
ROLE = 68
KF, SF, UF = 164, 208, 224
QF = 164
LDS_QST = 0


def prologue(S):
    S(f"""s_cmp_ge_u32 s2, 256
    s_cbranch_scc1 L_end
    s_load_dwordx16 s[4:19], s[0:1], 0
    s_load_dwordx8 s[20:27], s[0:1], 64
    s_load_dwordx2 s[28:29], s[0:1], 96
    v_lshrrev_b32 v{vT0}, 6, v0
    v_and_b32 v{vL}, 63, v0
    s_and_b32 s{sX}, s2, 7
    s_lshr_b32 s{sR}, s2, 3
    v_readfirstlane_b32 s{sW}, v{vT0}
    s_lshr_b32 s{sS1}, s{sX}, 2
    s_lshl_b32 s{sS1}, s{sS1}, 2
    s_lshr_b32 s80, s{sR}, 3
    s_add_u32 s{sS1}, s{sS1}, s80
    s_and_b32 s{sR1}, s{sX}, 3
    s_lshl_b32 s{sR1}, s{sR1}, 3
    s_and_b32 s80, s{sR}, 7
    s_add_u32 s{sR1}, s{sR1}, s80""")
    for i in range(20):
        S(f"s_mov_b32 s{sKS+i}, {i*8192}")
    S(f"""v_and_b32 v{vT0}, 7, v{vL}
    v_lshrrev_b32 v{vT1}, 3, v{vL}
    v_lshlrev_b32 v{vQZO}, 4, v{vT0}
    s_mul_i32 s80, s2, {8*1280}
    s_mul_i32 s81, s{sW}, 320
    s_add_u32 s80, s80, s81
    v_mul_u32_u24 v{vQO}, 1280, v{vT0}
    v_lshl_add_u32 v{vQO}, v{vT1}, 3, v{vQO}
    v_add_u32 v{vQO}, s80, v{vQO}
    s_mul_i32 s80, s2, 20480
    s_mul_i32 s81, s{sW}, 5120
    s_add_u32 s80, s80, s81
    s_add_u32 s80, s80, {QZ:#x}
    v_lshl_add_u32 v{vQZO}, v{vT1}, 7, v{vQZO}
    v_add_u32 v{vQZO}, s80, v{vQZO}
    s_movk_i32 s{sT0}, 5120
    s_waitcnt lgkmcnt(0)""")
    srd(S, R_WS, P_WS, 0x10000000)
    srd(S, R_DBG, P_DBG, 256)
    srd(S, R_D, P_Q, 2048 * 1280)


def kv_addr(S):
    srd(S, R_A, P_K, 2048 * 1280)
    srd(S, R_B, P_V, 2048 * 1280)
    srd(S, R_C, P_SH, 640 * 8)
    S(f"""s_mul_i32 s80, s{sR}, {96*1280}
    s_mul_i32 s81, s{sX}, 160
    s_mul_i32 s82, s{sW}, 40
    s_add_u32 s81, s81, s82
    s_add_u32 s80, s80, s81
    v_mul_u32_u24 v{vT1}, 43, v{vL}
    v_lshrrev_b32 v{vT1}, 9, v{vT1}
    v_mul_u32_u24 v{vT0}, 12, v{vT1}
    v_sub_u32 v{vT0}, v{vL}, v{vT0}
    v_mul_u32_u24 v{vKB}, {8*1280}, v{vT0}
    v_lshl_add_u32 v{vKB}, v{vT1}, 3, v{vKB}
    v_add_u32 v{vKB}, s80, v{vKB}
    v_subrev_u32 v{vKA}, 3840, v{vKB}
    s_lshl_b32 s81, s81, 2
    v_lshl_add_u32 v{vSO}, v{vT1}, 5, s81
    s_mul_i32 s82, s{sR}, 12
    s_sub_u32 s82, 256, s82
    v_cmp_gt_u32 vcc, s82, v{vT0}
    v_cmp_gt_u32 s[82:83], 5, v{vT1}
    s_and_b64 vcc, vcc, s[82:83]
    v_mov_b32 v{vUO}, {OOB:#x}
    v_cndmask_b32 v{vKB}, v{vUO}, v{vKB}, vcc
    v_cndmask_b32 v{vKA}, v{vUO}, v{vKA}, vcc
    v_cndmask_b32 v{vSO}, v{vUO}, v{vSO}, vcc""")
    S(f"""s_lshl_b32 s81, s81, 9
    s_mul_i32 s82, s{sR}, 192
    s_sub_u32 s81, s81, s82
    s_add_u32 s81, s81, {U_ + 4080:#x}
    v_lshlrev_b32 v{vT1}, 14, v{vT1}
    v_lshlrev_b32 v{vT0}, 4, v{vT0}
    v_sub_u32 v{vT1}, v{vT1}, v{vT0}
    v_add_u32 v{vT1}, s81, v{vT1}
    v_cndmask_b32 v{vUO}, v{vUO}, v{vT1}, vcc""")


def zero_flags(S):
    z = KF
    S("\n".join(f"v_mov_b32 v{z+i}, 0" for i in range(4)))
    l = lab("nz")
    S.push()
    S(f"""s_cmp_lg_u32 s2, 0
    s_cbranch_scc1 {l}
    v_lshlrev_b32 v{vT0}, 7, v0
    buffer_store_dword v{z}, v{vT0}, {R(R_WS)}, 0 offen sc1
    v_add_u32 v{vT1}, {256*128}, v{vT0}
    v_cmp_gt_u32 vcc, {L_END-256}, v0
    v_mov_b32 v{vT0}, {OOB:#x}
    v_cndmask_b32 v{vT1}, v{vT0}, v{vT1}, vcc
    buffer_store_dword v{z}, v{vT1}, {R(R_WS)}, 0 offen sc1
    {l}:""")
    S.pop()
    S(f"""s_lshl_b32 s80, s{sS1}, 12
    s_lshr_b32 s81, s{sW}, 1
    s_lshl_b32 s82, s81, 10
    s_add_u32 s80, s80, s82
    s_lshl_b32 s82, s{sR1}, 5
    s_add_u32 s80, s80, s82
    s_and_b32 s83, s{sW}, 1
    s_lshl_b32 s82, s83, 4
    s_add_u32 s80, s80, s82
    s_add_u32 s80, s80, {ST1:#x}
    v_lshl_add_u32 v{vT0}, v{vL}, 11, s80
    s_lshl_b32 s80, s{sX}, 14
    s_lshl_b32 s82, s81, 13
    s_add_u32 s80, s80, s82
    s_lshl_b32 s82, s{sR}, 8
    s_add_u32 s80, s80, s82
    s_lshl_b32 s82, s83, 7
    s_add_u32 s80, s80, s82
    s_add_u32 s80, s80, {ST2 - 128:#x}
    v_lshl_add_u32 v{vT1}, v{vL}, 4, s80
    v_cmp_gt_u32 vcc, 2, v{vL}
    v_cndmask_b32 v{vT1}, v{vT1}, v{vT0}, vcc
    v_subrev_u32 v{z+4}, 2, v{vL}
    v_cmp_gt_u32 vcc, 6, v{z+4}
    v_mov_b32 v{vT0}, {OOB:#x}
    v_cndmask_b32 v{vT1}, v{vT1}, v{vT0}, vcc
    v_cmp_lt_u32 vcc, 15, v{vL}
    v_cndmask_b32 v{vT1}, v{vT1}, v{vT0}, vcc
    buffer_store_dwordx4 {v(z,4)}, v{vT1}, {R(R_WS)}, 0 offen sc1""")


def kv_loads(S):
    S(f"buffer_load_dwordx4 {v(SR,4)}, v{vSO}, {R(R_C)}, 0 offen")
    S(f"buffer_load_dwordx4 {v(SR+4,4)}, v{vSO}, {R(R_C)}, 0 offen offset:16")
    stamp(S, "b0")
    for i in range(11):
        if i in (1, 3, 4, 7):
            stamp(S, f"b{i}")
        if i < 3:
            S(f"buffer_load_dwordx2 {v(KR+2*i,2)}, v{vKA}, {R(R_A)}, 0 offen offset:{1280*i}")
        else:
            j = i - 3
            so = "0" if j < 4 else f"s{sT0}"
            S(f"buffer_load_dwordx2 {v(KR+2*i,2)}, v{vKB}, {R(R_A)}, {so} offen offset:{1280*(j&3)}")
        if i >= 3:
            j = i - 3
            so = "0" if j < 4 else f"s{sT0}"
            S(f"buffer_load_dwordx2 {v(VR+2*j,2)}, v{vKB}, {R(R_B)}, {so} offen offset:{1280*(j&3)}")
    return 21


def q_loads(S):
    for it in range(5):
        S(f"buffer_load_dwordx2 {v(QR+2*it,2)}, v{vQO}, {R(R_D)}, 0 offen offset:{64*it}")
    return 5


def ready_load(S):
    S(f"v_mov_b32 v{vRDY}, 0")
    S(f"buffer_load_dword v{vRDY}, v{vRDY}, {R(R_DBG)}, 0 offen sc1")


def ready_flag(S, nloads):
    l = lab("nr")
    S.push()
    S(f"""s_cmp_lg_u32 s2, 0
    s_cbranch_scc1 {l}
    s_waitcnt vmcnt({nloads})
    s_barrier
    v_mov_b32 v{vT0}, 0
    v_mov_b32 v{vT1}, 1
    s_cmp_eq_u32 s{sW}, 0
    s_cselect_b32 exec_lo, 1, 0
    s_mov_b32 exec_hi, 0
    buffer_store_dword v{vT1}, v{vT0}, {R(R_DBG)}, 0 offen sc1
    s_mov_b64 exec, -1
    {l}:""")
    S.pop()


def cvt_lo(S, d, s):
    S(f"v_lshlrev_b32 v{d}, 16, v{s}")


def cvt_hi(S, d, s):
    S(f"v_and_b32 v{d}, 0xffff0000, v{s}")


def kv_compute(S):
    for c in range(4):
        for j in range(4):
            (cvt_hi if j & 1 else cvt_lo)(S, SF + 4 * j + c, SR + 2 * c + (j >> 1))

    def cvk(i):
        for c in range(4):
            (cvt_hi if c & 1 else cvt_lo)(S, KF + 4 * i + c, KR + 2 * i + (c >> 1))
    for i in range(3):
        cvk(i)
    for tt in range(8):
        cvk(tt + 3)
        if tt == 0:
            ready_load(S)
        u = UF + 4 * tt
        for h in (0, 2):
            S(f"v_pk_mul_f32 {v(u+h,2)}, {v(KF+4*tt+h,2)}, {v(SF+12+h,2)}")
        for j in (2, 1, 0):
            for h in (0, 2):
                S(f"v_pk_fma_f32 {v(u+h,2)}, {v(KF+4*(tt+3-j)+h,2)}, {v(SF+4*j+h,2)}, {v(u+h,2)}")
        for c in range(4):
            (cvt_hi if c & 1 else cvt_lo)(S, KF + 4 * tt + c, VR + 2 * tt + (c >> 1))
        for h in (0, 2):
            S(f"v_pk_mul_f32 {v(u+h,2)}, {v(u+h,2)}, {v(KF+4*tt+h,2)}")
    for c in range(4):
        o = KR + 2 + 4 * c
        for e in range(4):
            S(f"v_cvt_pk_bf16_f32 v{o+e}, v{UF+4*(7-2*e)+c}, v{UF+4*(6-2*e)+c}")
        S(f"buffer_store_dwordx4 {v(o,4)}, v{vUO}, {R(R_WS)}, 0 offen sc1", tag="U")
        if c < 3:
            S(f"v_add_u32 v{vUO}, 4096, v{vUO}")


def q_stats(S):
    for it in range(5):
        for c in range(4):
            (cvt_hi if c & 1 else cvt_lo)(S, QF + 4 * it + c, QR + 2 * it + (c >> 1))
    A, B = QF + 20, QF + 22
    S(f"v_pk_add_f32 {v(A,2)}, {v(QF,2)}, {v(QF+2,2)}")
    S(f"v_pk_mul_f32 {v(B,2)}, {v(QF,2)}, {v(QF,2)}")
    S(f"v_pk_fma_f32 {v(B,2)}, {v(QF+2,2)}, {v(QF+2,2)}, {v(B,2)}")
    for i in range(4, 20, 2):
        S(f"v_pk_add_f32 {v(A,2)}, {v(A,2)}, {v(QF+i,2)}")
        S(f"v_pk_fma_f32 {v(B,2)}, {v(QF+i,2)}, {v(QF+i,2)}, {v(B,2)}")
    S(f"""v_add_f32 v{A}, v{A}, v{A+1}
    v_add_f32 v{B}, v{B}, v{B+1}
    v_permlane32_swap_b32 v{A}, v{B}
    v_add_f32 v{A}, v{A}, v{B}
    v_mov_b32 v{B}, v{A}
    v_permlane16_swap_b32 v{A}, v{B}
    v_add_f32 v{A}, v{A}, v{B}
    v_add_f32_dpp v{A}, v{A}, v{A} row_ror:8 row_mask:0xf bank_mask:0xf
    v_lshrrev_b32 v{vT0}, 5, v{vL}
    v_and_b32 v{vT1}, 7, v{vL}
    v_lshlrev_b32 v{vT1}, 4, v{vT1}
    v_lshl_add_u32 v{vT0}, v{vT0}, 7, v{vT1}
    s_lshl_b32 s80, s{sW}, 2
    v_add_u32 v{vT0}, s80, v{vT0}
    ds_write_b32 v{vT0}, v{A} offset:{LDS_QST}""")


def arrive_first(S, line_base, vt):
    l, d = lab("rdy"), lab("rdyd")
    S.push()
    S(f"""s_cmp_lg_u32 s{sW}, 0
    s_cbranch_scc1 {d}
    s_mov_b32 s{sBOUND}, {SPIN}
    {l}:
    v_readfirstlane_b32 s80, v{vRDY}
    s_cmp_lg_u32 s80, 0
    s_cbranch_scc1 {l}_ok
    v_mov_b32 v{vRDY}, 0
    buffer_load_dword v{vRDY}, v{vRDY}, {R(R_DBG)}, 0 offen sc1
    s_waitcnt vmcnt(0)
    s_sub_u32 s{sBOUND}, s{sBOUND}, 1
    s_cbranch_scc0 {l}
    s_branch L_end
    {l}_ok:""")
    line_xr(S, 80, line_base)
    S(f"""v_mov_b32 v{vt}, s80
    v_mov_b32 v{vt+1}, 1
    s_mov_b64 exec, 1
    buffer_atomic_add v{vt+1}, v{vt}, {R(R_WS)}, 0 offen sc1
    s_mov_b64 exec, -1
    {d}:""")
    S.pop()


def q_finish(S):
    A = QF + 20
    S(f"""ds_read_b128 {v(A,4)}, v{vT1} offset:{LDS_QST}
    ds_read_b128 {v(A+4,4)}, v{vT1} offset:{LDS_QST+128}
    v_pk_add_f32 {v(A,2)}, {v(A,2)}, {v(A+2,2)}
    v_pk_add_f32 {v(A+4,2)}, {v(A+4,2)}, {v(A+6,2)}
    v_add_f32 v{A}, v{A}, v{A+1}
    v_add_f32 v{A+4}, v{A+4}, v{A+5}
    v_mul_f32 v{A}, {f2h(1/640)}, v{A}
    v_mul_f32 v{A+4}, {f2h(1/640)}, v{A+4}
    v_fma_f32 v{A+4}, -v{A}, v{A}, v{A+4}
    v_max_f32 v{A+4}, 0, v{A+4}
    v_add_f32 v{A+4}, {f2h(1e-5)}, v{A+4}
    v_rsq_f32 v{A+4}, v{A+4}
    v_mul_f32 v{A}, v{A}, v{A+4}
    v_mov_b32 v{A+5}, v{A+4}
    v_sub_f32 v{A}, 0, v{A}
    v_mov_b32 v{A+1}, v{A}""")
    for it in range(5):
        o = UF + 4 * it
        for h in (0, 2):
            S(f"v_pk_fma_f32 {v(QF+4*it+h,2)}, {v(QF+4*it+h,2)}, {v(A+4,2)}, {v(A,2)}")
        S(f"""v_mov_b32 v{o}, v{QR+2*it}
        v_mov_b32 v{o+1}, v{QR+2*it+1}
        v_cvt_pk_bf16_f32 v{o+2}, v{QF+4*it}, v{QF+4*it+1}
        v_cvt_pk_bf16_f32 v{o+3}, v{QF+4*it+2}, v{QF+4*it+3}""")
        if it < 4:
            S(f"buffer_store_dwordx4 {v(o,4)}, v{vQZO}, {R(R_WS)}, 0 offen offset:{1024*it} sc1", tag="QZ")
        else:
            S(f"v_add_u32 v{vQZO}, 4096, v{vQZO}")
            S(f"buffer_store_dwordx4 {v(o,4)}, v{vQZO}, {R(R_WS)}, 0 offen sc1", tag="QZ")


def f2h(x):
    import struct
    return hex(struct.unpack("<I", struct.pack("<f", x))[0])


def line_xr(S, sd, base):
    S(f"""s_lshl_b32 s{sd}, s{sX}, 2
    s_lshr_b32 s{sd+1}, s{sR}, 3
    s_add_u32 s{sd}, s{sd}, s{sd+1}
    s_lshl_b32 s{sd}, s{sd}, 7
    s_add_u32 s{sd}, s{sd}, {CNT + base*128}""")


WD, WG, WU = ROLE, ROLE + 32, ROLE + 64
vWL = 67
LDS_WD = 1024
LDS_WDA = LDS_WD + 256 * 128
LDS_W1R = LDS_WDA + 1024
LDS_W1 = 36864


def w_loads(S):
    t = KF + 8
    srd(S, R_E, P_WD, 1728 * 1280)
    S(f"""s_mul_i32 s80, s{sX}, 10
    s_add_u32 s80, s80, s{sR}
    s_sub_u32 s80, s80, 22
    s_mul_i32 s80, s80, 216
    v_add_u32 v{t}, s80, v0
    s_mov_b32 s81, 52429
    v_mul_lo_u32 v{t+1}, v{t}, s81
    v_lshrrev_b32 v{t+1}, 22, v{t+1}
    v_mul_u32_u24 v{t+2}, 80, v{t+1}
    v_sub_u32 v{t+2}, v{t}, v{t+2}
    v_mul_u32_u24 v{t+3}, 9363, v{t+1}
    v_lshrrev_b32 v{t+3}, 16, v{t+3}
    v_mul_u32_u24 v{t+3}, 7, v{t+3}
    v_sub_u32 v{t+3}, v{t+1}, v{t+3}
    v_cmp_gt_u32 vcc, 168, v{t+1}
    v_and_b32 v{t+4}, 1, v{t+1}
    v_cndmask_b32 v{t+3}, v{t+4}, v{t+3}, vcc
    v_and_b32 v{t+4}, 1, v{t+3}
    v_cmp_eq_u32 vcc, 6, v{t+3}""")
    S(f"""v_lshlrev_b32 v{t+5}, 3, v{t+1}
    v_lshlrev_b32 v{t+4}, 2, v{t+4}
    v_sub_u32 v{t+5}, v{t+5}, v{t+4}
    v_mul_u32_u24 v{t+5}, 1280, v{t+5}
    v_lshl_add_u32 v{t+5}, v{t+2}, 4, v{t+5}
    v_mov_b32 v{t+6}, {8*1280}
    v_mov_b32 v{t+7}, {2*1280}
    v_cndmask_b32 v{t+8}, v{t+6}, v{t+7}, vcc
    v_mov_b32 v{t+6}, {4*1280}
    v_cndmask_b32 v{t+9}, v{t+7}, v{t+6}, vcc
    v_mov_b32 v{t+6}, {10*1280}
    v_mov_b32 v{t+7}, {6*1280}
    v_cndmask_b32 v{t+10}, v{t+6}, v{t+7}, vcc
    v_cmp_gt_u32 vcc, 216, v0
    v_mov_b32 v{t+6}, {OOB:#x}
    v_cndmask_b32 v{t+5}, v{t+6}, v{t+5}, vcc
    v_add_u32 v{t+8}, v{t+5}, v{t+8}
    v_add_u32 v{t+9}, v{t+5}, v{t+9}
    v_add_u32 v{t+10}, v{t+5}, v{t+10}""")
    for e, ad in enumerate((t + 5, t + 8, t + 9, t + 10)):
        S(f"buffer_load_dwordx4 {v(WD+8*e,4)}, v{ad}, {R(R_E)}, 0 offen")
        S(f"buffer_load_dwordx4 {v(WD+8*e+4,4)}, v{ad}, {R(R_E)}, 0 offen offset:1280")
    S(f"""v_mul_u32_u24 v{t+3}, 205, v{t+2}
    v_lshrrev_b32 v{t+3}, 11, v{t+3}
    v_mul_u32_u24 v{t+4}, 10, v{t+3}
    v_sub_u32 v{t+4}, v{t+2}, v{t+4}
    v_mul_u32_u24 v{t+3}, 54, v{t+3}
    v_lshrrev_b32 v{t+7}, 2, v{t+1}
    v_add_u32 v{t+3}, v{t+3}, v{t+7}
    v_mul_u32_u24 v{t+3}, 5, v{t+3}
    v_lshrrev_b32 v{t+7}, 1, v{t+4}
    v_add_u32 v{t+3}, v{t+3}, v{t+7}
    v_lshlrev_b32 v{t+3}, 10, v{t+3}
    v_and_b32 v{t+7}, 3, v{t+1}
    v_lshl_add_u32 v{t+3}, v{t+7}, 8, v{t+3}
    v_and_b32 v{t+7}, 1, v{t+4}
    v_lshl_add_u32 v{t+3}, v{t+7}, 7, v{t+3}
    v_add_u32 v{t+3}, {WDP:#x}, v{t+3}
    v_cndmask_b32 v{vWL}, v{t+6}, v{t+3}, vcc""")
    srd(S, R_A, P_WG, 640 * 3456)
    srd(S, R_B, P_WU, 640 * 3456)
    S(f"""v_lshrrev_b32 v{t}, 4, v0
    v_mul_u32_u24 v{t+1}, 52, v{t}
    v_lshrrev_b32 v{t+1}, 8, v{t+1}
    v_mul_u32_u24 v{t+2}, 80, v{t+1}
    v_sub_u32 v{t+2}, v0, v{t+2}
    s_mul_i32 s80, s{sX}, 27
    s_mul_i32 s81, s{sR}, 3
    s_add_u32 s80, s80, s81
    s_sub_u32 s80, s80, 66
    s_lshl_b32 s80, s80, 4
    v_mul_u32_u24 v{t+3}, {8*3456}, v{t+2}
    v_lshl_add_u32 v{t+3}, v{t+1}, 4, v{t+3}
    v_add_u32 v{t+3}, s80, v{t+3}
    s_cmp_lt_u32 s{sR}, 31
    s_cselect_b32 s81, 240, 0
    v_cmp_gt_u32 vcc, s81, v0
    v_cndmask_b32 v{t+3}, v{t+6}, v{t+3}, vcc
    s_movk_i32 s82, 6912
    s_movk_i32 s83, {2*6912}
    s_movk_i32 s84, {3*6912}""")
    for i in range(8):
        so = "0" if i < 2 else f"s{81 + (i>>1)}"
        S(f"buffer_load_dwordx4 {v(WG+4*i,4)}, v{t+3}, {R(R_A)}, {so} offen offset:{3456*(i&1)}")
        S(f"buffer_load_dwordx4 {v(WU+4*i,4)}, v{t+3}, {R(R_B)}, {so} offen offset:{3456*(i&1)}")
    return 8 + 16


def wd_prep(S):
    O = KF
    t = KF + 32
    S(f"""s_mov_b32 s80, 0x05040100
    s_mov_b32 s81, 0x07060302
    v_and_b32 v{t}, 7, v0
    v_lshlrev_b32 v{t+1}, 7, v0
    v_lshlrev_b32 v{t+2}, 2, v0
    ds_write_b32 v{t+2}, v{vWL} offset:{LDS_WDA}""")
    for d in range(8):
        for e2 in range(4):
            S(f"v_perm_b32 v{O+4*d+e2}, v{WD+4*(2*e2+1)+(d>>1)}, v{WD+4*(2*e2)+(d>>1)}, s{80+(d&1)}")
        S(f"v_xor_b32 v{t+3}, {d}, v{t}")
        S(f"v_lshl_add_u32 v{t+3}, v{t+3}, 4, v{t+1}")
        S(f"ds_write_b128 v{t+3}, {v(O+4*d,4)} offset:{LDS_WD}")
    S("s_waitcnt lgkmcnt(0)\ns_barrier")
    S(f"""v_lshrrev_b32 v{t+1}, 3, v0
    v_and_b32 v{t+2}, 7, v{t+1}
    v_xor_b32 v{t+2}, v{t+2}, v{t}
    v_lshlrev_b32 v{t+2}, 4, v{t+2}
    v_lshl_add_u32 v{t+2}, v{t+1}, 7, v{t+2}
    v_lshlrev_b32 v{t+1}, 2, v{t+1}
    v_lshlrev_b32 v{t}, 4, v{t}""")
    for it in range(7):
        S(f"ds_read_b32 v{t+4+it}, v{t+1} offset:{LDS_WDA + 128*it}")
        S(f"ds_read_b128 {v(O+4*it,4)}, v{t+2} offset:{LDS_WD + 4096*it}")
    for it in range(7):
        S(f"v_add_u32 v{t+4+it}, v{t+4+it}, v{t}")
        S(f"buffer_store_dwordx4 {v(O+4*it,4)}, v{t+4+it}, {R(R_WS)}, 0 offen sc1", tag="WD")


def w1_prep(S):
    F = KF
    T = KF + 16
    t = KF + 40
    O = UF
    for m, W in enumerate((WG, WU)):
        for p in range(4):
            for i in range(8):
                cvt_lo(S, T + 2 * i, W + 4 * i + p)
                cvt_hi(S, T + 2 * i + 1, W + 4 * i + p)
            S(f"v_pk_add_f32 {v(F+8*m+2*p,2)}, {v(T,2)}, {v(T+2,2)}")
            for i in range(2, 8):
                S(f"v_pk_add_f32 {v(F+8*m+2*p,2)}, {v(F+8*m+2*p,2)}, {v(T+2*i,2)}")
    for sh in (1, 2, 4, 8):
        for c in range(16):
            S(f"v_add_f32_dpp v{F+c}, v{F+c}, v{F+c} row_ror:{sh} row_mask:0xf bank_mask:0xf")
    S(f"""v_lshrrev_b32 v{t}, 4, v0
    v_lshlrev_b32 v{t+1}, 6, v{t}""")
    for c in range(4):
        S(f"ds_write_b128 v{t+1}, {v(F+4*c,4)} offset:{LDS_W1R + 16*c}")
    S(f"""s_waitcnt lgkmcnt(0)
    s_barrier
    v_mul_u32_u24 v{t+1}, 52, v{t}
    v_lshrrev_b32 v{t+1}, 8, v{t+1}
    v_min_u32 v{t+1}, 2, v{t+1}
    v_mul_u32_u24 v{t+1}, 320, v{t+1}""")
    for c in range(4):
        S(f"ds_read_b128 {v(F+4*c,4)}, v{t+1} offset:{LDS_W1R + 16*c}")
    for rr in range(1, 5):
        for c in range(4):
            S(f"ds_read_b128 {v(T+4*c,4)}, v{t+1} offset:{LDS_W1R + 64*rr + 16*c}")
        for c in range(8):
            S(f"v_pk_add_f32 {v(F+2*c,2)}, {v(F+2*c,2)}, {v(T+2*c,2)}")
    for c in range(16):
        S(f"v_mul_f32 v{F+c}, {f2h(-1/640)}, v{F+c}")
    S(f"""v_lshlrev_b32 v{t+2}, 8, v0
    v_and_b32 v{t+3}, 15, v0
    v_cmp_gt_u32 vcc, 240, v0
    s_and_saveexec_b64 s[82:83], vcc""")
    for m, W in enumerate((WG, WU)):
        for p in range(4):
            for i in range(8):
                cvt_lo(S, T + 2 * i, W + 4 * i + p)
                cvt_hi(S, T + 2 * i + 1, W + 4 * i + p)
                S(f"v_pk_add_f32 {v(T+2*i,2)}, {v(T+2*i,2)}, {v(F+8*m+2*p,2)}")
            for h in range(2):
                o = O + 4 * ((2 * p + h) & 7)
                for e2 in range(4):
                    S(f"v_cvt_pk_bf16_f32 v{o+e2}, v{T+4*e2+h}, v{T+4*e2+2+h}")
                j = 4 * p + h + 2 * m
                S(f"v_xor_b32 v{t+4}, {j}, v{t+3}")
                S(f"v_lshl_add_u32 v{t+4}, v{t+4}, 4, v{t+2}")
                S(f"ds_write_b128 v{t+4}, {v(o,4)} offset:{LDS_W1}")
    S(f"""s_mov_b64 exec, s[82:83]
    s_waitcnt lgkmcnt(0)
    s_barrier
    v_and_b32 v{t+4}, 15, v{t}
    v_xor_b32 v{t+4}, v{t+4}, v{t+3}
    v_lshlrev_b32 v{t+4}, 4, v{t+4}
    v_lshl_add_u32 v{t+4}, v{t}, 8, v{t+4}
    v_add_u32 v{t+4}, {LDS_W1}, v{t+4}
    s_mul_i32 s80, s{sX}, 27
    s_mul_i32 s81, s{sR}, 3
    s_add_u32 s80, s80, s81
    s_sub_u32 s80, s80, 66
    s_mul_i32 s80, s80, 20480
    s_add_u32 s80, s80, {W1P:#x}
    v_lshl_add_u32 v{t+5}, v0, 4, s80""")
    B = ROLE
    for it in range(15):
        S(f"ds_read_b128 {v(B+4*it,4)}, v{t+4} offset:{4096*it}")
    for it in range(15):
        so = "0" if it < 2 else f"s{sKS + (it>>1)}"
        if it == 1:
            S(f"v_add_u32 v{t+6}, 4096, v{t+5}")
        S(f"buffer_store_dwordx4 {v(B+4*it,4)}, v{t+5+(it&1)}, {R(R_WS)}, {so} offen sc1", tag="W1")
```

```python
import sys
from common import *
import prep, conv
from prep import vT0, vT1, vL

REF = "interleave_layers__ssm_conv_h3__geglu_ffn__prompt.s.ref"
FTR = """L_end:
s_endpgm
.section .rodata,"a"
.p2align 6
.amdhsa_kernel %s
  .amdhsa_next_free_vgpr 512
  .amdhsa_next_free_sgpr 102
  .amdhsa_accum_offset 256
  .amdhsa_group_segment_fixed_size 0
  .amdhsa_kernarg_size 104
  .amdhsa_user_sgpr_count 2
  .amdhsa_user_sgpr_kernarg_segment_ptr 1
  .amdhsa_system_sgpr_workgroup_id_x 1
.end_amdhsa_kernel
""" % KN


def header():
    out = []
    for line in open(REF):
        if line.startswith("; @launch"):
            line = "; @launch grid=(256,1,1) block=(256,1,1) lds=163840\n"
        out.append(line)
        if line.startswith(KN + ":"):
            break
    return "".join(out)


def stop_at(S, name):
    if Cfg.stop == name:
        S.drain()
        S("s_waitcnt vmcnt(0) lgkmcnt(0)")
        ts_flush(S, 207)
        S("s_branch L_end")


def sync_signal(S, sline):
    S("s_barrier")
    signal(S, sline, vT0, vT1)


def front(S):
    prep.prologue(S)
    prep.zero_flags(S)
    stamp(S, "start")
    S(f"s_cmp_ge_u32 s{sR}, 22\ns_cbranch_scc1 L_prep")
    prep.kv_addr(S)
    stamp(S, "a0")
    n = prep.kv_loads(S)
    stamp(S, "a1")
    n += prep.q_loads(S)
    stamp(S, "a2")
    n += conv.h_loads(S)
    stamp(S, "a3")
    n += conv.d_load(S)
    prep.ready_flag(S, n)
    stamp(S, "issued")
    prep.kv_compute(S)
    stamp(S, "kvdone")
    prep.q_stats(S)
    S.wait_tag("U")
    S.wait_ds()
    S("s_barrier")
    prep.arrive_first(S, L_U, prep.KF + 40)
    stamp(S, "Uarr")
    prep.q_finish(S)
    S(f"s_cmp_ge_u32 s{sR}, 20\ns_cbranch_scc1 L_kvonly")
    conv.h_build(S)
    ts_move(S, 58)
    S.wait_tag("QZ")
    S.wait_ds()
    prep.line_xr(S, 80, L_QZ)
    sync_signal(S, 80)
    stamp(S, "QZarr")
    S(f"s_lshl_b32 s80, s{sX}, 9\ns_add_u32 s80, s80, {CNT + L_U*128}")
    conv.wave0_poll(S, 80, 3, f"""v_mov_b32 v{conv.EP+1}, 8
    v_cmp_eq_u32 s[82:83], 2, v{vL}
    v_cndmask_b32 v{conv.EP+1}, v{conv.EP+1}, 6, s[82:83]""", conv.EP)
    stamp(S, "Upoll")
    conv.u_dma(S)
    fs = conv.FragSched(27, 24)
    S.wait_tag("U2")
    stamp(S, "Udma")
    fs.emit(S, 0, fs.n0 - 30, fence=fs.n0)
    S.wait_tag("U0")
    fs.emit(S, fs.n0 - 30, fs.n0)
    for p in range(2):
        if p == 1:
            fs.emit(S, fs.n0, len(fs.seq))
        stamp(S, f"conv{p}")
        if p == 0:
            S(f"s_mov_b32 s80, {CNT + L_QZ*128}")
            conv.wave0_poll(S, 80, 32, f"v_mov_b32 v{conv.EP+1}, 8", conv.EP)
        conv.qz_loads(S, p)
        conv.y_stage(S, p)
        S.wait_ds()
        S("s_barrier")
        conv.x1_out(S, p)
        S.wait_tag("X1")
        conv.x1_line(S, p, 80)
        sync_signal(S, 80)
        stamp(S, f"x1_{p}")
    S.drain()
    ts_move(S, 206)
    S("s_branch L_ffn")
    Cfg.tsr = 150
    S("L_kvonly:")
    S.reset()
    S("s_waitcnt vmcnt(0) lgkmcnt(0)")
    prep.line_xr(S, 80, L_QZ)
    sync_signal(S, 80)
    ts_move(S, 206)
    S("s_branch L_ffn")
    Cfg.tsr = 150
    S("L_prep:")
    S.reset()
    ts_move(S, 215)
    prep.q_loads(S)
    prep.ready_load(S)
    stamp(S, "a2")
    prep.w_loads(S)
    stamp(S, "issued")
    prep.q_stats(S)
    stamp(S, "qst")
    S.wait_ds()
    S("s_barrier")
    prep.q_finish(S)
    S.wait_tag("QZ")
    S("s_barrier")
    prep.arrive_first(S, L_QZ, prep.KF + 40)
    stamp(S, "QZarr")
    prep.wd_prep(S)
    S.wait_tag("WD")
    S(f"s_lshl_b32 s80, s{sX}, 7\ns_add_u32 s80, s80, {CNT + L_WD*128}")
    sync_signal(S, 80)
    stamp(S, "WDarr")
    S.drain()
    S(f"s_cmp_ge_u32 s{sR}, 31\ns_cbranch_scc1 L_ffn0")
    prep.w1_prep(S)
    S.wait_tag("W1")
    S(f"s_lshl_b32 s80, s{sX}, 7\ns_add_u32 s80, s80, {CNT + L_W1*128}")
    sync_signal(S, 80)
    stamp(S, "W1arr")
    S.drain()
    S("L_ffn0:")
    ts_move(S, 206)
    S("L_ffn:")
    S.reset()
    stop_at(S, "front")


def build():
    S = Stream()
    front(S)
    if Cfg.stop != "front":
        import ffn
        ffn.ffn(S, stop_at)
    S.drain()
    text, L = finalize(S)
    return header() + text + FTR, L


if __name__ == "__main__":
    import argparse
    ap = argparse.ArgumentParser()
    ap.add_argument("-o", default="k.s")
    ap.add_argument("--ts", action="store_true")
    ap.add_argument("--stop")
    A = ap.parse_args()
    Cfg.ts, Cfg.stop = A.ts, A.stop
    t, L = build()
    open(A.o, "w").write(t)
    import json
    json.dump(TSN, open(A.o + ".json", "w"))
    from collections import Counter
    print(Counter(i.kind for i in L))
```

```python
import re

REG_RE = re.compile(r'\b([vas])\[(\d+):(\d+)\]|\b([vas])(\d+)\b|\b(vcc|exec|m0)(?:_lo|_hi)?\b')
TRANS = ('v_exp_f32', 'v_log_f32', 'v_rcp_f32', 'v_rsq_f32', 'v_sqrt_f32', 'v_sin_f32', 'v_cos_f32')
DPPW = ('quad_perm', 'row_shr', 'row_shl', 'row_ror', 'row_bcast', 'row_mirror', 'row_half_mirror', 'row_newbcast', 'wave_')


def regs_of(tok):
    out = []
    for m in REG_RE.finditer(tok):
        if m.group(1):
            out += [m.group(1) + str(i) for i in range(int(m.group(2)), int(m.group(3)) + 1)]
        elif m.group(4):
            out.append(m.group(4) + m.group(5))
        else:
            out.append(m.group(6))
    return out


def split_ops(s):
    ops, depth, cur = [], 0, ''
    for ch in s:
        if ch == '[':
            depth += 1
        if ch == ']':
            depth -= 1
        if ch == ',' and depth == 0:
            ops.append(cur.strip())
            cur = ''
        else:
            cur += ch
    if cur.strip():
        ops.append(cur.strip())
    return ops


class Ins:
    __slots__ = ('text', 'op', 'kind', 'rd', 'wr', 'srcc', 'tag', 'cost', 'meta')

    def __init__(self, text, tag=None, meta=None):
        self.text = text
        self.tag = tag
        self.meta = meta
        self.srcc = ()
        t = text.split(';')[0].strip()
        if t.endswith(':'):
            self.op, self.kind, self.rd, self.wr, self.cost = t, 'label', (), (), 0
            return
        if t.startswith('.') or t == '':
            self.op, self.kind, self.rd, self.wr, self.cost = t, 'dir', (), (), 0
            return
        sp = t.split(None, 1)
        op = sp[0]
        rest = sp[1] if len(sp) > 1 else ''
        ops = split_ops(rest)
        R = [regs_of(o) for o in ops]
        flat = lambda L: [r for x in L for r in x]
        self.op = op
        self.cost = 1
        k = None
        rd, wr = [], []
        if op.startswith('v_mfma'):
            k = 'mfma8' if '32x32' in op else 'mfma4'
            wr, rd = R[0], flat(R[1:])
            self.srcc = tuple(R[3])
        elif op.startswith('buffer_load') or op.startswith('global_load'):
            if re.search(r'\blds\b', rest) or 'load_lds' in op:
                k, rd = 'dma', flat(R) + ['m0']
            else:
                k, wr, rd = 'vld', R[0], flat(R[1:])
        elif op.startswith('buffer_store') or op.startswith('global_store'):
            k, rd = 'vst', flat(R)
        elif op.startswith('buffer_atomic') or op.startswith('global_atomic'):
            k, rd = 'vst', flat(R)
            assert not re.search(r'\bsc0\b', rest), "returning atomics unsupported"
        elif op.startswith('ds_read') or op.startswith('ds_bpermute') or op.startswith('ds_swizzle'):
            k, wr, rd = 'dsr', R[0], flat(R[1:])
        elif op.startswith('ds_'):
            k, rd = 'dsw', flat(R)
        elif op.startswith('s_load') or op == 's_memtime' or op == 's_memrealtime':
            k, wr, rd = 'smem', R[0], flat(R[1:])
        elif op == 's_waitcnt':
            k = 'wait'
        elif op == 's_nop':
            k = 'nop'
            self.cost = int(rest) + 1
        elif op in ('s_barrier', 's_setprio', 's_sleep', 's_endpgm'):
            k = 'sctl'
        elif op.startswith('s_cbranch') or op == 's_branch':
            k = 'branch'
            if 'vcc' in op:
                rd = ['vcc']
            if 'exec' in op:
                rd = ['exec']
        elif op.startswith('s_cmp') or op.startswith('s_bitcmp'):
            k, rd = 'salu', flat(R)
        elif op.startswith('s_'):
            k, wr, rd = 'salu', R[0], flat(R[1:])
            if 'saveexec' in op:
                wr = wr + ['exec']
                rd = rd + ['exec']
            if op.startswith('s_cmov') or op.startswith('s_addk') or op.startswith('s_mulk'):
                rd = rd + R[0]
        elif op.startswith('v_'):
            k = 'valu'
            if op.startswith('v_cmpx'):
                wr, rd = ['exec'] + R[0], flat(R[1:])
            elif op.startswith('v_permlane') and 'swap' in op:
                k = 'perm'
                wr = rd = flat(R)
            elif op.startswith('v_swap'):
                wr = rd = flat(R)
            elif op == 'v_nop':
                pass
            else:
                wr, rd = R[0], flat(R[1:])
                if op.startswith(('v_fmac', 'v_mac', 'v_dot2c', 'v_pk_fmac', 'v_writelane')):
                    rd = rd + R[0]
                if op.startswith(('v_add_co', 'v_sub_co', 'v_addc_co', 'v_subb_co')):
                    wr = R[0] + R[1]
                    rd = flat(R[2:])
                if op.startswith(TRANS):
                    k = 'trans'
                    self.cost = 2
                if op.startswith(('v_readfirstlane', 'v_readlane')):
                    k = 'rdlane'
                if any(w in rest for w in DPPW):
                    k = 'dpp'
                    rd = rd + R[0]
        else:
            raise ValueError("unknown op " + text)
        self.kind, self.rd, self.wr = k, tuple(rd), tuple(wr)


VALU_KINDS = ('valu', 'trans', 'dpp', 'perm', 'rdlane')


class Stream:
    def __init__(self):
        self.L = []

    def __call__(self, text, tag=None):
        for line in text.strip().split('\n'):
            line = line.strip()
            if line and not line.startswith(';'):
                self.L.append(Ins(line, tag))
        return self

    def pseudo(self, what, arg=None):
        i = Ins('')
        i.kind = 'pseudo'
        i.meta = (what, arg)
        self.L.append(i)

    def wait_tag(self, tag):
        self.pseudo('wait_tag', tag)

    def wait_ds(self):
        self.pseudo('wait_ds')

    def drain(self):
        self.pseudo('drain')

    def push(self):
        self.pseudo('push')

    def pop(self):
        self.pseudo('pop')

    def reset(self):
        self.pseudo('reset')

    def need(self, name):
        self.pseudo('need', name)

    def have(self, name):
        self.pseudo('have', name)

    def extend(self, other):
        self.L += other.L
        return self


def interleave(main, side, slots, start=0, stop=None):
    out = Stream()
    S = list(side.L)
    si = 0
    M = main.L
    nm = 0
    i = 0
    while i < len(M):
        ins = M[i]
        out.L.append(ins)
        i += 1
        if ins.kind in ('mfma4', 'mfma8'):
            used = 0
            j = i
            while j < len(M) and M[j].kind not in ('mfma4', 'mfma8'):
                if M[j].kind not in ('pseudo', 'label', 'dir'):
                    used += M[j].cost
                j += 1
            out.L += M[i:j]
            i = j
            if nm >= start and (stop is None or nm < stop):
                while si < len(S):
                    c = S[si].cost if S[si].kind not in ('pseudo', 'label', 'dir') else 0
                    if used + c > slots:
                        break
                    out.L.append(S[si])
                    used += c
                    si += 1
            nm += 1
    out.L += S[si:]
    return out


def weave(main, segs):
    out = Stream()
    Q = []
    for st, sl, s in segs:
        Q += [(st, sl, i) for i in s.L]
    qi = 0
    free = ('pseudo', 'label', 'dir')
    while qi < len(Q) and Q[qi][0] < 0:
        out.L.append(Q[qi][2])
        qi += 1
    M = main.L
    nm = 0
    i = 0

    def emit_main(ins):
        nonlocal qi
        if ins.kind == 'pseudo' and ins.meta[0] == 'need':
            js = [j for j in range(len(Q)) if Q[j][2].kind == 'pseudo' and Q[j][2].meta == ('have', ins.meta[1])]
            assert js, ins.meta
            if qi <= js[0]:
                print(f"  weave: forced {sum(q[2].cost for q in Q[qi:js[0]] if q[2].kind not in free)} slots for {ins.meta[1]} at mfma {nm}")
            while qi <= js[0]:
                out.L.append(Q[qi][2])
                qi += 1
        else:
            out.L.append(ins)
    while i < len(M):
        ins = M[i]
        emit_main(ins)
        i += 1
        if ins.kind in ('mfma4', 'mfma8'):
            used = 0
            while i < len(M) and M[i].kind not in ('mfma4', 'mfma8'):
                if M[i].kind not in free:
                    used += M[i].cost
                emit_main(M[i])
                i += 1
            while qi < len(Q) and nm >= Q[qi][0]:
                c = Q[qi][2].cost if Q[qi][2].kind not in free else 0
                if used + c > Q[qi][1]:
                    break
                out.L.append(Q[qi][2])
                used += c
                qi += 1
                if qi == len(Q) or Q[qi][0] != Q[qi - 1][0]:
                    print(f"  weave: segment(start {Q[qi-1][0]}) done at mfma {nm}")
            nm += 1
    if qi < len(Q):
        print(f"  weave: tail {sum(q[2].cost for q in Q[qi:] if q[2].kind not in free)} slots")
    out.L += [q[2] for q in Q[qi:]]
    return out


def insert_waits(L):
    out = []
    vm, lg = [], []
    stack = []

    def emit_wait(v=None, l=None):
        parts = []
        if v is not None:
            parts.append(f'vmcnt({min(v, 63)})')
            del vm[:len(vm) - v]
        if l is not None:
            parts.append(f'lgkmcnt({min(l, 15)})')
            del lg[:len(lg) - l]
        out.append(Ins('s_waitcnt ' + ' '.join(parts)))

    for ins in L:
        if ins.kind == 'pseudo':
            what, arg = ins.meta
            if what == 'wait_tag':
                idx = [i for i, e in enumerate(vm) if e[1] == arg]
                if idx:
                    emit_wait(v=len(vm) - 1 - idx[-1])
            elif what == 'wait_ds':
                if lg:
                    emit_wait(l=0)
            elif what == 'drain':
                if vm or lg:
                    emit_wait(v=0 if vm else None, l=0 if lg else None)
            elif what == 'push':
                stack.append((list(vm), list(lg)))
            elif what == 'pop':
                ovm, olg = stack.pop()
                nv = [e for e in vm if not any(e is o for o in ovm)]
                nl = [e for e in lg if not any(e is o for o in olg)]
                wv = any(e[0] or e[1] for e in nv)
                wl = len(nl) > 0
                if wv or wl:
                    emit_wait(v=0 if wv else None, l=0 if wl else None)
                vm[:] = ovm
                lg[:] = olg
            elif what == 'reset':
                vm.clear()
                lg.clear()
            continue
        if ins.kind == 'wait':
            m = re.search(r'vmcnt\((\d+)\)', ins.text)
            if m:
                n = int(m.group(1))
                if n < len(vm):
                    del vm[:len(vm) - n]
            m = re.search(r'lgkmcnt\((\d+)\)', ins.text)
            if m:
                n = int(m.group(1))
                if n == 0 or not any(e[2] for e in lg):
                    if n < len(lg):
                        del lg[:len(lg) - n]
            out.append(ins)
            continue
        touch = set(ins.rd) | set(ins.wr)
        v = l = None
        for i in range(len(vm) - 1, -1, -1):
            if vm[i][0] & touch:
                v = len(vm) - 1 - i
                break
        for i in range(len(lg) - 1, -1, -1):
            if lg[i][0] & touch:
                l = 0 if any(e[2] for e in lg) else len(lg) - 1 - i
                break
        if v is not None or l is not None:
            emit_wait(v, l)
        out.append(ins)
        if ins.kind in ('vld', 'vst', 'dma'):
            vm.append((set(ins.wr), ins.tag, False))
        elif ins.kind in ('dsr', 'dsw'):
            lg.append((set(ins.wr), ins.tag, False))
        elif ins.kind == 'smem':
            lg.append((set(ins.wr), ins.tag, True))
    return out


def need_states(p, c):
    n = 0
    pw, pr = set(p.wr), set(p.rd)
    cr, cw = set(c.rd), set(c.wr)
    isv = lambda s: {r for r in s if r[0] in 'va' and r[1:].isdigit()}
    iss = lambda s: {r for r in s if (r[0] == 's' and r[1:].isdigit()) or r == 'vcc'}
    if p.kind in VALU_KINDS:
        vw = isv(pw)
        sw = iss(pw)
        if c.kind in ('mfma4', 'mfma8') and vw & cr:
            n = max(n, 2)
        if c.kind in ('dpp', 'perm') and vw & cr:
            n = max(n, 2)
        if c.kind == 'rdlane' and vw & cr:
            n = max(n, 1)
        if p.kind == 'trans' and c.kind in VALU_KINDS and vw & cr:
            n = max(n, 1)
        if p.kind == 'trans' and c.kind in ('vst', 'dsw', 'vld', 'dsr', 'dma') and vw & cr:
            n = max(n, 1)
        if p.op.startswith('v_dot') and vw & (cr | cw):
            same = c.op == p.op and not (vw & set(c.rd[:-1]))
            if not same:
                n = max(n, 3)
        if sw & cr:
            if c.kind in ('vld', 'vst', 'dma'):
                n = max(n, 5)
            elif c.kind in VALU_KINDS:
                n = max(n, 4 if c.op.startswith(('v_readlane', 'v_writelane')) else 2)
            elif c.kind in ('salu', 'branch', 'smem'):
                n = max(n, 1)
        if 'exec' in pw:
            if c.kind == 'dpp':
                n = max(n, 5)
            elif c.kind in ('perm', 'rdlane', 'mfma4', 'mfma8'):
                n = max(n, 4)
            elif c.kind == 'branch':
                n = max(n, 5)
        if ('sdwa' in p.text or 'op_sel' in p.text) and c.kind in VALU_KINDS and vw & (cr | cw):
            n = max(n, 1)
    if p.kind in ('mfma4', 'mfma8'):
        e = p.kind == 'mfma8'
        if c.kind in ('mfma4', 'mfma8'):
            cs = set(c.srcc)
            ab = cr - cs if not (cs <= cr and False) else cr
            abregs = set(c.rd[:len(c.rd) - len(c.srcc)])
            if pw & abregs:
                n = max(n, 12 if e else 8)
            if pw & cs:
                if not (tuple(p.wr) == tuple(c.srcc) and p.kind == c.kind):
                    n = max(n, 10 if e else 6)
            elif pw & cw:
                n = max(n, 12 if e else 8)
        else:
            if pw & (cr | cw):
                n = max(n, 12 if e else 8)
            if c.kind in VALU_KINDS and set(p.srcc) & cw:
                n = max(n, 7 if e else 3)
    if p.kind == 'vst' and ('x4' in p.op or 'x3' in p.op) and isv(pr) & cw:
        n = max(n, 2 if c.kind in VALU_KINDS else 1)
    if p.kind == 'salu' and 'm0' in pw and c.kind == 'dma':
        n = max(n, 1)
    return n


def insert_nops(L):
    out = []
    for ins in L:
        if ins.kind in ('label', 'dir'):
            out.append(ins)
            continue
        need = 0
        dist = 0
        for p in reversed(out):
            if p.kind in ('label', 'dir'):
                continue
            if dist >= 12:
                break
            r = need_states(p, ins) - dist
            if r > need:
                need = r
            dist += p.cost if p.kind == 'nop' else 1
        while need > 0:
            k = min(need, 8)
            out.append(Ins(f's_nop {k - 1}'))
            need -= k
        out.append(ins)
    return out


def finalize(stream):
    L = insert_waits(stream.L)
    L = insert_nops(L)
    return '\n'.join(('' if i.kind == 'label' else '  ') + i.text for i in L) + '\n', L
```

```python
from asmlib import Stream, interleave, weave, finalize

KN = "interleave_layers__ssm_conv_h3__geglu_ffn__prompt_kernel"

import os
WSOFF = int(os.environ.get('WSOFF', '0'), 0)
CNT = 0
L_U, L_QZ, L_WD, L_W1, L_X1, L_H, L_X3, L_END = 0, 80, 88, 94, 128, 256, 768, 1024
TS = 0x00080000
U_ = 0x00100000
QZ = 0x00400000
QS = 0x00700000
W1P = 0x00A00000
WDP = 0x00F00000
X1 = 0x01200000
YY = 0x01500000
X3 = 0x01800000
H1 = 0x01B00000
H2 = 0x02200000
ST1 = 0x02A00000
ST2 = 0x02A80000
ST3 = 0x02B00000
XSUB = 160 * 1024
HSUB = 448 * 1024
OOB = 0x80000000

P_Q, P_K, P_V, P_SH, P_H, P_D, P_BX, P_WG, P_WU, P_WD, P_OUT, P_DBG, P_WS = range(4, 30, 2)
sX, sR, sW, sB = 30, 31, 32, 33
sBOUND = 34
sT0 = 35
R_WS = 36
R_A, R_B, R_C, R_D, R_E = 40, 44, 48, 52, 56
sKS = 60
sS1, sR1 = 90, 91
sTL, sTG, sDB = 95, 100, 101
sTMP = 80
R_DBG = 96

SPIN = 1 << 20
NT = 'nt'


def srd(S, r, p, size, add=None):
    if add is None:
        S(f"s_mov_b32 s{r}, s{p}\ns_mov_b32 s{r+1}, s{p+1}")
    else:
        S(f"s_add_u32 s{r}, s{p}, {add}\ns_addc_u32 s{r+1}, s{p+1}, 0")
    S(f"s_mov_b32 s{r+2}, {size:#x}\ns_mov_b32 s{r+3}, 0x00020000")


def R(r):
    return f"s[{r}:{r+3}]"


def v(a, n=1):
    return f"v{a}" if n == 1 else f"v[{a}:{a+n-1}]"


def a(i, n=1):
    return f"a{i}" if n == 1 else f"a[{i}:{i+n-1}]"


_uid = [0]


def lab(p):
    _uid[0] += 1
    return f"L_{p}_{_uid[0]}"


class Cfg:
    ts = False
    tsr = 150
    stop = None


TSN = {}


def stamp(S, name):
    if not Cfg.ts:
        return
    if name == "start":
        idx, op = 0, "s_memtime"
        S(f"v_mov_b32 v{Cfg.tsr}, -1")
        stamp(S, "rt0")
    elif name in ("rt0", "rt1"):
        idx, op = (63 if name == "rt0" else 62), "s_memrealtime"
    else:
        idx, op = TSN.setdefault(name, len(TSN) + 1), "s_memtime"
        assert idx < 62
    S(f"""{op} s[92:93]
    s_waitcnt lgkmcnt(0)
    v_writelane_b32 v{Cfg.tsr}, s92, {idx}""")


def ts_move(S, new):
    if Cfg.ts and new != Cfg.tsr:
        S(f"v_mov_b32 v{new}, v{Cfg.tsr}")
    Cfg.tsr = new


def ts_flush(S, vt):
    if not Cfg.ts:
        return
    stamp(S, "end")
    stamp(S, "rt1")
    S(f"""s_lshl_b32 s94, s2, 2
    s_add_u32 s94, s94, s{sW}
    s_lshl_b32 s94, s94, 8
    s_add_u32 s94, s94, {TS:#x}
    v_lshl_add_u32 v{vt}, v1, 2, s94
    buffer_store_dword v{Cfg.tsr}, v{vt}, {R(R_WS)}, 0 offen
    s_waitcnt vmcnt(0)""")


def poll(S, voff, vtgt, vtmp):
    l, d = lab("poll"), lab("pdone")
    S.drain()
    S(f"""s_mov_b32 s{sBOUND}, {SPIN}
    {l}:
    buffer_load_dword v{vtmp}, v{voff}, {R(R_WS)}, 0 offen sc1
    s_waitcnt vmcnt(0)
    v_cmp_gt_u32 vcc, v{vtgt}, v{vtmp}
    s_cbranch_vccz {d}
    s_sub_u32 s{sBOUND}, s{sBOUND}, 1
    s_cbranch_scc0 {l}
    s_branch L_end
    {d}:""")


def signal(S, sline_expr_sgpr, vt0, vt1):
    S.push()
    S(f"""v_mov_b32 v{vt0}, s{sline_expr_sgpr}
    v_mov_b32 v{vt1}, 1
    s_cmp_eq_u32 s{sW}, 0
    s_cselect_b32 exec_lo, 1, 0
    s_mov_b32 exec_hi, 0
    buffer_atomic_add v{vt1}, v{vt0}, {R(R_WS)}, 0 offen sc1
    s_mov_b64 exec, -1""")
    S.pop()


COLD = Stream()


def poll_issue(S, vt, vbase, sline):
    S(f"""v_add_u32 v{vt}, s{sline}, v{vbase}
    buffer_load_dword v{vt+1}, v{vt}, {R(R_WS)}, 0 offen sc1""")


def poll_check(S, vt, tgt, mask, nap=0):
    l, b = lab("cp"), lab("cpb")
    S(f"""v_cmp_gt_u32 vcc, {tgt}, v{vt+1}
    s_and_b32 vcc_lo, vcc_lo, {mask:#x}
    s_cbranch_scc1 {l}
    {b}:""")
    COLD.reset()
    COLD(f"""{l}:
    s_mov_b32 s{sBOUND}, {SPIN}
    {l}_a:
    {'s_sleep %d' % nap if nap else ''}
    buffer_load_dword v{vt+1}, v{vt}, {R(R_WS)}, 0 offen sc1
    s_waitcnt vmcnt(0)
    v_cmp_gt_u32 vcc, {tgt}, v{vt+1}
    s_and_b32 vcc_lo, vcc_lo, {mask:#x}
    s_cbranch_scc0 {b}
    s_sub_u32 s{sBOUND}, s{sBOUND}, 1
    s_cbranch_scc0 {l}_a
    s_branch L_end""")


def all_issue(S, vt):
    S(f"""v_lshlrev_b32 v{vt}, 7, v1
    v_and_b32 v{vt+1}, 0x780, v{vt}
    buffer_load_dword v{vt+2}, v{vt}, {R(R_WS)}, 0 offen sc1
    buffer_load_dword v{vt+3}, v{vt+1}, {R(R_WS)}, s{sKS+1} offen sc1""")


def all_check(S, vt, nap=0):
    l, b = lab("ca"), lab("cab")
    test = f"v_min_u32 v{vt+2}, v{vt+2}, v{vt+3}\nv_cmp_gt_u32 vcc, 8, v{vt+2}"
    S(f"{test}\ns_cbranch_vccnz {l}\n{b}:")
    COLD.reset()
    COLD(f"""{l}:
    s_mov_b32 s{sBOUND}, {SPIN}
    {l}_a:
    {'s_sleep %d' % nap if nap else ''}
    buffer_load_dword v{vt+2}, v{vt}, {R(R_WS)}, 0 offen sc1
    buffer_load_dword v{vt+3}, v{vt+1}, {R(R_WS)}, s{sKS+1} offen sc1
    s_waitcnt vmcnt(0)
    {test}
    s_cbranch_vccz {b}
    s_sub_u32 s{sBOUND}, s{sBOUND}, 1
    s_cbranch_scc0 {l}_a
    s_branch L_end""")


def signal_w(S, sline, vsel, vt):
    S(f"""v_or_b32 v{vt}, s{sline}, v{vsel}
    v_mov_b32 v{vt+1}, 1
    buffer_atomic_add v{vt+1}, v{vt}, {R(R_WS)}, 0 offen sc1""")


def sel_regs(S, vsel, vpl):
    S(f"""v_mov_b32 v{vsel}, {OOB:#x}
    v_lshlrev_b32 v{vpl}, 7, v1
    v_cmp_gt_u32 vcc, 16, v1
    v_cndmask_b32 v{vpl}, v{vsel}, v{vpl}, vcc
    v_cmp_eq_u32 vcc, 0, v1
    v_cndmask_b32 v{vsel}, v{vsel}, 0, vcc""")
```

```python
from common import *
from prep import vTID, vL, vT0, vT1, ROLE, cvt_lo, cvt_hi

YST, CHS = 0, 2112
HB, HCH = 8448, 16640
UB, UCH, UCP = 75008, 12480, 6240

HX, HY, vD = ROLE, ROLE + 16, ROLE + 24
vAB, vBB = 94, 95
vYW0, vYW1, vTR = 96, 97, 98
vQA, vXA, vQS = 99, 100, 101
cPL, cTS = 102, 103
vWD, vW1 = 104, 109
cSEL = 111
UOF = 112
cPT = 122
AD = 12
ACC = 16
EP = 48
POOL = 124


def h_loads(S):
    S(f"s_lshl_b32 s82, s84, 12")
    srd(S, R_E, P_H, 4096, add="s82")
    S(f"""v_lshlrev_b32 v{vD}, 4, v{vL}
    v_subrev_u32 v{vD+1}, 8, v{vD}""")
    for it in range(4):
        S(f"buffer_load_dwordx4 {v(HX+4*it,4)}, v{vD}, {R(R_E)}, 0 offen offset:{1024*it} {NT}")
    S(f"buffer_load_dwordx2 {v(HY,2)}, v{vD+1}, {R(R_E)}, 0 offen {NT}")
    S(f"v_add_u32 v{vD+1}, 1016, v{vD}")
    for it in range(1, 4):
        S(f"buffer_load_dwordx2 {v(HY+2*it,2)}, v{vD+1}, {R(R_E)}, 0 offen offset:{1024*(it-1)} {NT}")
    return 8


def d_load(S):
    srd(S, R_D, P_D, 1280)
    S(f"""s_lshl_b32 s82, s84, 1
    v_mov_b32 v{vD}, s82
    buffer_load_ushort v{vD}, v{vD}, {R(R_D)}, 0 offen""")
    return 1


def h_build(S):
    T = 164
    S(f"""s_mul_i32 s80, s{sW}, {HCH}
    s_add_u32 s80, s80, {HB}
    v_lshl_add_u32 v{vT0}, v{vL}, 4, s80""")
    for i in range(4):
        S(f"v_mov_b32 v{T+i}, 0")
    S(f"""v_and_b32 v{vT1}, 3, v{vL}
    v_bfe_u32 v{T+4}, v{vL}, 2, 2
    v_mul_u32_u24 v{T+4}, 260, v{T+4}
    v_add_u32 v{vT1}, v{vT1}, v{T+4}
    v_lshl_add_u32 v{vT1}, v{vT1}, 4, s80
    ds_write_b128 v{vT1}, {v(T,4)}
    s_mul_i32 s81, s{sW}, {UCH}
    s_add_u32 s81, s81, {UB + 320*16}
    v_lshl_add_u32 v{vT1}, v{vL}, 4, s81""")
    for cp in range(2):
        for o in (0, 6 * 16):
            S(f"ds_write_b128 v{vT1}, {v(T,4)} offset:{cp*UCP + o}")
    for it in range(4):
        X, Y = HX + 4 * it, HY + 2 * it
        c0, c1, c2 = T + 8 + 12 * (it & 1), T + 12 + 12 * (it & 1), T + 16 + 12 * (it & 1)
        d = [Y, Y + 1, X, X + 1, X + 2, X + 3]
        for i in range(4):
            S(f"v_alignbit_b32 v{c0+i}, v{d[i+1]}, v{d[i]}, 16")
        for i in range(4):
            S(f"v_mov_b32 v{c1+i}, v{d[i+1]}")
        for i in range(4):
            S(f"v_alignbit_b32 v{c2+i}, v{d[i+2]}, v{d[i+1]}, 16")
        for sg, r_ in enumerate((c0, c1, c2, X)):
            S(f"ds_write_b128 v{vT0}, {v(r_,4)} offset:{48 + sg*4160 + 1024*it}")
    S(f"""v_and_b32 v{T}, 3, v{vL}
    v_bfe_u32 v{T+1}, v{vL}, 2, 2
    v_lshrrev_b32 v{T+2}, 4, v{vL}
    v_add_u32 v{T+3}, v{T+1}, v{T+2}
    v_lshlrev_b32 v{T+4}, 16, v{vD}
    v_and_b32 v{T+5}, 1, v{T}
    v_cmp_eq_u32 vcc, 0, v{T+5}
    v_cndmask_b32 v{T+4}, v{vD}, v{T+4}, vcc
    v_cmp_eq_u32 vcc, 3, v{T+3}
    v_cndmask_b32 v{T+4}, 0, v{T+4}, vcc
    v_cmp_gt_u32 vcc, 2, v{T}
    v_cndmask_b32 v{AD}, v{T+4}, 0, vcc
    v_cndmask_b32 v{AD+1}, 0, v{T+4}, vcc
    v_mov_b32 v{AD+2}, 0
    v_mov_b32 v{AD+3}, 0""")


def conv_addr(S):
    T = 130
    S(f"""s_lshl_b32 s84, s2, 2
    s_add_u32 s84, s84, s{sW}
    s_mul_i32 s80, s{sW}, {HCH}
    s_add_u32 s80, s80, {HB}""")
    S(f"""v_and_b32 v{T}, 3, v{vL}
    v_bfe_u32 v{T+1}, v{vL}, 2, 2
    v_lshrrev_b32 v{T+2}, 4, v{vL}
    v_add_u32 v{T+3}, v{T+1}, v{T+2}
    v_mul_u32_u24 v{vAB}, 260, v{T}
    v_add_u32 v{vAB}, v{vAB}, v{T+3}
    v_lshl_add_u32 v{vAB}, v{vAB}, 4, s80""")
    S(f"""v_and_b32 v{T}, 15, v{vL}
    v_subrev_u32 v{T+1}, 4, v{T}
    v_cmp_gt_u32 vcc, 8, v{T+1}
    v_and_b32 v{T+3}, 7, v{T}
    v_cndmask_b32 v{T+1}, v{T+3}, v{T+1}, vcc
    v_cndmask_b32 v{T+3}, 0, 1, vcc""")
    S(f"""s_mul_i32 s81, s{sW}, {UCH}
    s_add_u32 s81, s81, {UB + 16*70}
    v_mul_u32_u24 v{T+4}, 10, v{T+1}
    v_sub_u32 v{T+4}, v{T+2}, v{T+4}
    v_lshlrev_b32 v{T+4}, 4, v{T+4}
    v_add_u32 v{T+4}, s81, v{T+4}
    v_mov_b32 v{T+5}, {UCP}
    v_cndmask_b32 v{T+5}, v{T+5}, 0, vcc
    v_add_u32 v{vBB}, v{T+4}, v{T+5}""")
    S(f"""v_lshrrev_b32 v{T+4}, 1, v{T+1}
    v_and_b32 v{T+5}, 1, v{T+1}
    v_lshlrev_b32 v{T+4}, 8, v{T+4}
    v_lshl_add_u32 v{T+4}, v{T+5}, 6, v{T+4}
    v_lshl_add_u32 v{T+4}, v{T+2}, 3, v{T+4}
    v_lshl_add_u32 v{T+4}, v{T+3}, 2, v{T+4}
    s_mul_i32 s81, s{sW}, {CHS}
    s_add_u32 s81, s81, {YST}
    v_add_u32 v{vYW0}, s81, v{T+4}
    v_add_u32 v{vYW1}, 1024, v{vYW0}""")
    S(f"""v_bfe_u32 v{T+4}, v{vL}, 2, 2
    v_mul_u32_u24 v{T+4}, {CHS}, v{T+4}
    v_lshl_add_u32 v{T+4}, v{T+2}, 5, v{T+4}
    v_and_b32 v{T+5}, 3, v{vL}
    v_lshl_add_u32 v{T+4}, v{T+5}, 3, v{T+4}
    s_lshl_b32 s81, s{sW}, 8
    s_add_u32 s81, s81, {YST}
    v_add_u32 v{vTR}, s81, v{T+4}""")
    S(f"""v_lshrrev_b32 v{T+4}, 3, v{vL}
    v_and_b32 v{T+5}, 7, v{vL}
    v_mul_u32_u24 v{T+4}, 20480, v{T+4}
    v_lshl_add_u32 v{T+4}, v{T+5}, 4, v{T+4}
    s_mul_i32 s81, s{sW}, {8*20480}
    s_lshl_b32 s83, s2, 7
    s_add_u32 s81, s81, s83
    s_add_u32 s81, s81, {QZ:#x}
    v_add_u32 v{vQA}, s81, v{T+4}
    s_lshl_b32 s81, s{sW}, 10
    s_add_u32 s81, s81, {QS:#x}
    v_lshl_add_u32 v{vQS}, v{vL}, 4, s81
    s_mul_i32 s81, s{sW}, {2*XSUB}
    s_lshl_b32 s83, s2, 10
    s_add_u32 s81, s81, s83
    s_add_u32 s81, s81, {X1:#x}
    v_lshl_add_u32 v{vXA}, v{vL}, 4, s81""")
    for it in range(5):
        S(f"""v_add_u32 v{T+4}, {64*it}, v{vL}
        v_mul_u32_u24 v{T+5}, 205, v{T+4}
        v_lshrrev_b32 v{T+5}, 11, v{T+5}
        v_mul_u32_u24 v{T+6}, 10, v{T+5}
        v_sub_u32 v{T+6}, v{T+4}, v{T+6}
        v_lshl_add_u32 v{T+5}, v{T+5}, 3, v{T+6}
        v_lshlrev_b32 v{T+5}, 4, v{T+5}
        v_cmp_gt_u32 vcc, 8, v{T+6}
        v_mov_b32 v{T+6}, {OOB:#x}
        v_cndmask_b32 v{UOF+2*it}, v{T+6}, v{T+5}, vcc
        v_add_u32 v{UOF+2*it+1}, 8, v{UOF+2*it}""")
    sel_regs(S, cSEL, cPL)


def u_srd(S):
    S(f"""s_lshl_b32 s81, s84, 12
    s_add_u32 s81, s81, {U_:#x}""")
    srd(S, R_A, P_WS, 4096, add="s81")


def wave0_poll(S, first_line_sgpr, nlines, tgt_setup, vt):
    d = lab("w0p")
    S.drain()
    S(f"""s_cmp_lg_u32 s{sW}, 0
    s_cbranch_scc1 {d}
    v_lshl_add_u32 v{vt}, v{vL}, 7, s{first_line_sgpr}
    v_cmp_gt_u32 vcc, {nlines}, v{vL}
    v_mov_b32 v{vt+1}, {OOB:#x}
    v_cndmask_b32 v{vt}, v{vt+1}, v{vt}, vcc""")
    S(tgt_setup)
    S(f"v_cndmask_b32 v{vt+1}, 0, v{vt+1}, vcc")
    poll(S, vt, vt + 1, vt + 2)
    S(f"{d}:\ns_barrier")


def u_dma(S):
    for it in (2, 3, 4, 1, 0):
        for cp in range(2):
            S(f"""s_mul_i32 s80, s{sW}, {UCH}
            s_add_u32 m0, s80, {UB + cp*UCP + it*1024}
            buffer_load_dwordx4 v{UOF+2*it+cp}, {R(R_A)}, 0 offen sc1 lds""", tag=f"U{min(it,2)}")


def mfma_seq(p):
    seq = []
    c_hi, c_lo = 2 * p + 1, 2 * p
    for m in range(16 * c_hi + 16):
        extra = []
        for c in (c_hi, c_lo):
            if m > 16 * c + 15:
                continue
            nu = 16 * c - m + 15
            for rho in (1, 0):
                mu = m + rho
                if mu >= 1:
                    seq.append((2 * c + rho, ('A', mu), ('B', nu)))
                if mu == 1:
                    extra.append((2 * c + rho, ('D', 0), ('B', nu)))
        seq += extra
    return seq


def frag_read(f, reg):
    k, i = f
    if k == 'A':
        return f"ds_read_b128 {v(reg,4)}, v{vAB} offset:{64*(i-1)}"
    return f"ds_read_b128 {v(reg,4)}, v{vBB} offset:{16*(10*(31-(i>>1)) + 4*(1-(i&1)))}"


class FragSched:
    def __init__(self, nslots, look):
        self.seq = mfma_seq(0) + mfma_seq(1)
        self.n0 = len(mfma_seq(0))
        self.nslots, self.look = nslots, look
        self.res = {}
        self.free = list(range(nslots))
        self.first = set()

    def next_use(self, f, i):
        for j in range(i, len(self.seq)):
            if f in self.seq[j][1:]:
                return j
        return 1 << 30

    def fetch(self, S, i, maxn, limit):
        n = 0
        j = i
        while n < maxn and j < min(limit, len(self.seq)):
            for f in self.seq[j][1:]:
                if f[0] == 'D' or f in self.res or n >= maxn:
                    continue
                if self.free:
                    sl = self.free.pop(0)
                else:
                    vic = max(self.res, key=lambda g: self.next_use(g, i))
                    if self.next_use(vic, i) <= j:
                        return n
                    sl = self.res.pop(vic)
                self.res[f] = sl
                S(frag_read(f, POOL + 4 * sl))
                n += 1
            j += 1
        return n

    def emit(self, S, lo, hi, fence=None):
        fence = fence or len(self.seq)
        for i in range(lo, hi):
            if i == 0:
                self.fetch(S, i, 8, min(fence, i + self.look))
            acc, fa, fb = self.seq[i]
            for f in (fa, fb):
                if f[0] != 'D' and f not in self.res:
                    self.fetch(S, i, 2, i + 1)
            ra = AD if fa[0] == 'D' else POOL + 4 * self.res[fa]
            rb = POOL + 4 * self.res[fb]
            d = v(ACC + 4 * acc, 4)
            c = d if acc in self.first else "0"
            self.first.add(acc)
            S(f"v_mfma_f32_16x16x32_bf16 {d}, {v(ra,4)}, {v(rb,4)}, {c}")
            self.fetch(S, i + 1, 1, min(fence, i + 1 + self.look))


def qz_loads(S, p):
    for a_ in range(2):
        S(f"s_mov_b32 s80, {1310720 * p + 655360 * a_}")
        S(f"buffer_load_dwordx4 {v(EP+8*a_,4)}, v{vQA}, {R(R_WS)}, s80 offen sc1")
        S(f"s_mov_b32 s80, {8192 * p + 4096 * a_}")
        S(f"buffer_load_dwordx4 {v(EP+8*a_+4,4)}, v{vQS}, {R(R_WS)}, s80 offen sc1")


def y_stage(S, p):
    T = EP + 16
    for cl in range(2):
        for rho in range(2):
            A = ACC + 4 * (2 * (2 * p + cl) + rho)
            t = T + 2 * (2 * cl + rho)
            S(f"""v_cvt_pk_bf16_f32 v{t}, v{A}, v{A+2}
            v_cvt_pk_bf16_f32 v{t+1}, v{A+1}, v{A+3}
            ds_write2_b32 v{vYW1 if cl else vYW0}, v{t}, v{t+1} offset0:{8*rho} offset1:{8*rho+32}""")


def x1_out(S, p):
    Y = EP + 24
    F = EP + 32
    O = EP + 16
    for a_ in range(2):
        for par in range(2):
            S(f"ds_read_b64_tr_b16 {v(Y+4*a_+2*par,2)}, v{vTR} offset:{1024*a_ + 128*par}")
    for a_ in range(2):
        so = 4 * a_ * 2 * XSUB + p * XSUB
        S(f"s_mov_b32 s80, {so + YY - X1}")
        S(f"buffer_store_dwordx4 {v(Y+4*a_,4)}, v{vXA}, {R(R_WS)}, s80 offen sc1", tag="X1")
        for par in range(2):
            q = EP + 8 * a_ + 2 * par
            st = EP + 8 * a_ + 4 + 2 * par
            for h in range(2):
                f = F + 6 * h
                cvt_lo(S, f, q + h)
                cvt_hi(S, f + 1, q + h)
                cvt_lo(S, f + 4, Y + 4 * a_ + 2 * par + h)
                cvt_hi(S, f + 5, Y + 4 * a_ + 2 * par + h)
                for u in range(2):
                    S(f"v_fma_f32 v{f+2+u}, v{f+u}, v{st}, v{st+1}")
                for u in range(2):
                    S(f"v_fmac_f32 v{f+u}, v{f+2+u}, v{f+4+u}")
                S(f"v_cvt_pk_bf16_f32 v{O+4*a_+2*par+h}, v{f}, v{f+1}")
        S(f"s_mov_b32 s81, {so}")
        S(f"buffer_store_dwordx4 {v(O+4*a_,4)}, v{vXA}, {R(R_WS)}, s81 offen sc1", tag="X1")


def x1_line(S, p, sd):
    S(f"""s_and_b32 s{sd}, s2, 15
    s_lshl_b32 s{sd+1}, s{sW}, 4
    s_add_u32 s{sd}, s{sd}, s{sd+1}
    s_lshl_b32 s{sd}, s{sd}, 7
    s_add_u32 s{sd}, s{sd}, {CNT + (L_X1 + 64*p)*128}
    s_cmp_ge_u32 s2, 160
    s_cselect_b32 s{sd+1}, {OOB:#x}, 0
    s_or_b32 s{sd}, s{sd}, s{sd+1}""")
```

```python
import math
from common import *
from prep import vL, f2h, cvt_lo, cvt_hi
from conv import vWD, vW1, x1_line

vXB, vHB, vXE = 2, 3, 4
vA0 = 5
vHS, vHS7 = 8, 9
vXO, vPL = 10, 11
vS1, vS2 = 12, 13
vL16, vHB2 = 14, 15
ACCS = (16, 72)
BP, NB = 128, 6
AP, NA = 176, 6
CO = 200
vSEL, vTS = 206, 207
EO = 208
E1 = 212
T = 216
PT = 230
WDV = 232
LW1 = 20480
LST = 16384
LOUT = 24576
R_X, R_H, R_O = R_A, R_B, R_D

KAPPA = math.sqrt(2 / math.pi)
K1 = -2 * KAPPA * math.log2(math.e)


def new(f, *a, **k):
    s = Stream()
    f(s, *a, **k)
    return s


def retarget(S, r, const):
    S(f"s_add_u32 s{r}, s{P_WS}, {const:#x}\ns_addc_u32 s{r+1}, s{P_WS+1}, 0")


def setup(S):
    n, g, t = E1, E1 + 1, E1 + 2
    for r_ in (R_X, R_H):
        S(f"s_mov_b32 s{r_+2}, 0x00800000\ns_mov_b32 s{r_+3}, 0x00020000")
    retarget(S, R_X, X1)
    S(f"""v_and_b32 v{n}, 15, v{vL}
    v_lshrrev_b32 v{g}, 4, v{vL}
    v_lshlrev_b32 v{vL16}, 4, v{vL}
    v_lshlrev_b32 v{n}, 4, v{n}
    v_lshl_add_u32 v{t}, v{g}, 11, v{n}
    s_lshl_b32 s80, s{sW}, 8
    s_mul_i32 s81, s{sS1}, {2*XSUB}
    s_add_u32 s81, s81, s80
    v_add_u32 v{vXB}, s81, v{t}""")


def setup2(S):
    n, g, t = E1, E1 + 1, E1 + 2
    S(f"""s_lshl_b32 s80, s{sW}, 8
    s_mul_i32 s81, s{sW}, {14*8192}
    s_lshl_b32 s82, s{sTG}, 8
    s_add_u32 s81, s81, s82
    s_mul_i32 s83, s{sX}, {2*HSUB}
    s_add_u32 s81, s81, s83
    v_add_u32 v{vHB}, s81, v{t}
    s_cmp_eq_u32 s{sW}, 3
    s_cselect_b32 s81, {OOB:#x}, 0
    v_or_b32 v{vHB2}, s81, v{vHB}
    v_add_u32 v{vA0}, {LW1}, v{vL16}
    v_add_u32 v{vA0+1}, {LW1 + 9*7168}, v{vL16}
    v_add_u32 v{vA0+2}, {LW1 + 18*7168}, v{vL16}
    s_lshl_b32 s81, s{sTL}, 11
    s_add_u32 s81, s81, s80
    s_mul_i32 s83, s{sS1}, {2*HSUB}
    s_add_u32 s81, s81, s83
    v_lshl_add_u32 v{t}, v{g}, 10, v{n}
    v_add_u32 v{vHS}, s81, v{t}
    s_add_u32 s81, s81, {12*1024}
    s_cmp_lt_u32 s{sR1}, 24
    s_cselect_b32 s81, s81, {OOB:#x}
    v_lshrrev_b32 v{t+1}, 1, v{g}
    v_lshl_add_u32 v{vHS7}, v{t+1}, 10, v{n}
    v_and_b32 v{t+1}, 1, v{g}
    v_lshl_add_u32 v{vHS7}, v{t+1}, 3, v{vHS7}
    v_add_u32 v{vHS7}, s81, v{vHS7}
    s_mul_i32 s81, s{sDB}, {20*1024}
    s_add_u32 s81, s81, s82
    s_mul_i32 s83, s{sX}, {2*XSUB}
    s_add_u32 s81, s81, s83
    s_lshl_b32 s83, s{sW}, 12
    s_add_u32 s83, s83, s81
    v_add_u32 v{vXO}, s83, v{t}
    s_lshl_b32 s83, s{sW}, 10
    s_add_u32 s81, s81, s83
    s_add_u32 s81, s81, {16*1024}
    v_lshl_add_u32 v{vXE}, v{g}, 2, v{n}
    v_add_u32 v{vXE}, s81, v{vXE}
    s_lshl_b32 s81, s{sS1}, 12
    s_add_u32 s81, s81, s80
    s_add_u32 s81, s81, {ST1:#x}
    v_add_u32 v{vS1}, s81, v{n}
    s_lshl_b32 s81, s{sX}, 14
    s_lshl_b32 s83, s{sTG}, 11
    s_add_u32 s81, s81, s83
    s_add_u32 s81, s81, {ST2:#x}
    v_lshl_add_u32 v{vS2}, v{g}, 9, v{n}
    v_add_u32 v{vS2}, s81, v{vS2}""")
    sel_regs(S, vSEL, vPL)


def w_setup(S, t):
    S(f"""s_mul_i32 s80, s{sDB}, {54*5120}
    s_mul_i32 s81, s{sW}, {14*5120}
    s_add_u32 s80, s80, s81
    s_add_u32 s80, s80, {WDP:#x}
    v_lshl_add_u32 v{t}, v{vL}, 4, s80
    v_add_u32 v{vWD+4}, 4096, v{t}""")
    for s_ in range(4):
        S(f"s_xor_b32 s81, s{sW}, {s_}\ns_lshl_b32 s81, s81, 10\nv_add_u32 v{vWD+s_}, s81, v{t}")
    S(f"""s_mul_i32 s80, s{sTL}, 20480
    s_lshl_b32 s81, s{sW}, 10
    s_add_u32 s80, s80, s81
    s_add_u32 s80, s80, {W1P:#x}
    v_lshrrev_b32 v{t}, 4, v{vL}
    v_lshl_add_u32 v{t}, v{t}, 8, s80
    v_bfe_u32 v{t+1}, v{vL}, 3, 1
    v_mul_u32_u24 v{t+1}, 20480, v{t+1}
    v_and_b32 v{t+2}, 7, v{vL}
    v_lshl_add_u32 v{t+1}, v{t+2}, 4, v{t+1}
    v_add_u32 v{vW1}, v{t}, v{t+1}
    v_bfe_u32 v{t+1}, v{vL}, 1, 1
    v_bfe_u32 v{t+2}, v{vL}, 2, 2
    v_lshl_add_u32 v{t+1}, v{t+1}, 2, v{t+2}
    v_and_b32 v{t+2}, 1, v{vL}
    v_lshl_add_u32 v{t+1}, v{t+1}, 1, v{t+2}
    v_lshl_add_u32 v{vW1+1}, v{t+1}, 4, v{t}
    s_mul_i32 s89, s{sW}, 7168""")


def wpos(ks):
    return (ks + 16) % 20


def w1_dma1(S, m, i):
    so = (i & 6) * 20480 + (i & 1) * 128 + m * 4096
    S(f"""s_add_u32 m0, s89, {LW1 + wpos(4*m)*7168 + i*1024}
    s_mov_b32 s88, {so}
    buffer_load_dwordx4 v{vW1 + (i == 6)}, {R(R_WS)}, s88 offen sc1 lds""", tag=f"W1L{m}")


def w1_dma(S, m):
    for i in range(7):
        w1_dma1(S, m, i)


def wd_reg(q):
    return a(4 * q, 4) if q < 64 else v(WDV + 4 * (q - 64), 4)


def wd_load1(S, q):
    ks, s_ = divmod(q, 5)
    if q == 60:
        S(f"s_cmp_eq_u32 s{sW}, 3\ns_cselect_b32 s87, {OOB:#x}, 0")
    if ks == 12:
        S(f"v_or_b32 v{vWD+s_}, s87, v{vWD+s_}")
    if s_ == 0:
        S(f"s_mov_b32 s86, {ks*5120}")
    S(f"buffer_load_dwordx4 {wd_reg(q)}, v{vWD+s_}, {R(R_WS)}, s86 offen sc1")


def st1_task(S, sub, t):
    S(f"""s_lshr_b32 s80, s{sW}, 1
    s_mul_i32 s81, s80, {80*1024}
    s_and_b32 s82, s{sW}, 1
    s_lshl_b32 s82, s82, 4
    s_lshl_b32 s83, s{sR1}, 5
    s_add_u32 s82, s82, s83
    s_add_u32 s81, s81, s82
    s_mul_i32 s83, s{sS1}, {2*XSUB}
    s_add_u32 s81, s81, s83
    s_add_u32 s81, s81, {X1 + sub*XSUB:#x}
    v_lshl_add_u32 v{t+8}, v{vL}, 10, s81
    v_lshl_add_u32 v{t+9}, v{vPL}, 3, s81
    v_and_or_b32 v{t+9}, v{vPL}, v{t+10}, v{t+9}
    buffer_load_dwordx4 {v(t,4)}, v{t+8}, {R(R_WS)}, 0 offen sc1
    buffer_load_dwordx4 {v(t+4,4)}, v{t+9}, {R(R_WS)}, s{sKS+8} offen sc1
    s_lshl_b32 s80, s80, 10
    s_add_u32 s80, s80, s82
    s_lshl_b32 s81, s{sS1}, 12
    s_add_u32 s80, s80, s81
    s_add_u32 s85, s80, {ST1 + sub*2048:#x}""".replace(f"v_and_or_b32 v{t+9}, v{vPL}, v{t+10}, v{t+9}",
        f"v_and_b32 v{t+10}, {OOB:#x}, v{vPL}\n    v_or_b32 v{t+9}, v{t+10}, v{t+9}"))


def st1_finish(S, t):
    A = t + 8
    S("s_mov_b32 s81, 0x3f803f80")
    for j in range(4):
        for e in range(2):
            r_ = t + 2 * e + (j & 1) + 4 * (j >> 1)
            c0 = "0" if j == 0 else f"v{A+2*e}"
            c1 = "0" if j == 0 else f"v{A+2*e+1}"
            S(f"v_dot2_f32_bf16 v{A+2*e}, v{r_}, s81, {c0}")
            S(f"v_dot2_f32_bf16 v{A+2*e+1}, v{r_}, v{r_}, {c1}")
    S(f"""v_lshrrev_b32 v{t}, 4, v{vL}
    v_lshl_add_u32 v{t}, v{t}, 2, s85
    v_and_b32 v{t+1}, 15, v{vL}
    v_cmp_eq_u32 vcc, 0, v{t+1}
    v_mov_b32 v{t+1}, {OOB:#x}
    v_cndmask_b32 v{t}, v{t+1}, v{t}, vcc""")
    rows_reduce(S, A)
    for sh in (1, 2, 4, 8):
        S(f"v_add_f32_dpp v{A}, v{A}, v{A} row_ror:{sh} row_mask:0xf bank_mask:0xf")
    S(f"""v_or_b32 v{A}, 1, v{A}
    buffer_store_dword v{A}, v{t}, {R(R_WS)}, 0 offen sc1""")


def rows_reduce(S, A, mid=None):
    S(f"""v_permlane32_swap_b32 v{A}, v{A+2}
    v_permlane32_swap_b32 v{A+1}, v{A+3}
    v_add_f32 v{A}, v{A}, v{A+2}
    v_add_f32 v{A+1}, v{A+1}, v{A+3}""")
    if mid:
        S(mid)
    S(f"""v_permlane16_swap_b32 v{A}, v{A+1}
    v_add_f32 v{A}, v{A}, v{A+1}""")


def rows_gather(S, A):
    S(f"""v_mov_b32 v{A+1}, v{A}
    v_permlane16_swap_b32 v{A}, v{A+1}
    v_mov_b32 v{A+2}, v{A}
    v_mov_b32 v{A+3}, v{A+1}
    v_permlane32_swap_b32 v{A}, v{A+2}
    v_permlane32_swap_b32 v{A+1}, v{A+3}""")


def tag_loads(t, vaddr, so, off0, off1):
    return f"""buffer_load_dwordx4 {v(t,4)}, v{vaddr}, {R(R_WS)}, {so} offen offset:{off0} sc1
    buffer_load_dwordx4 {v(t+4,4)}, v{vaddr}, {R(R_WS)}, {so} offen offset:{off1} sc1"""


def tag_check(S, t, ld):
    l, b = lab("tp"), lab("tpb")
    test = f"""v_bitop3_b32 v{t+8}, v{t}, v{t+1}, v{t+2} bitop3:0x80
    v_bitop3_b32 v{t+9}, v{t+3}, v{t+4}, v{t+5} bitop3:0x80
    v_bitop3_b32 v{t+8}, v{t+8}, v{t+6}, v{t+7} bitop3:0x80
    v_bitop3_b32 v{t+8}, v{t+8}, v{t+9}, 1 bitop3:0x80
    v_cmp_eq_u32 vcc, 0, v{t+8}"""
    S(test)
    S(f"s_cbranch_vccnz {l}\n{b}:")
    COLD.reset()
    COLD(f"{l}:\ns_mov_b32 s{sBOUND}, {SPIN}\n{l}_a:")
    COLD(ld)
    COLD("s_waitcnt vmcnt(0)")
    COLD(test)
    COLD(f"""s_cbranch_vccz {b}
    s_sub_u32 s{sBOUND}, s{sBOUND}, 1
    s_cbranch_scc0 {l}_a
    s_branch L_end""")
    for i in range(4):
        S(f"v_add_f32 v{t+i}, v{t+i}, v{t+4+i}")


def mean_var(S, t):
    for e in (0, 2):
        S(f"v_mul_f32 v{t+e}, {f2h(1/640)}, v{t+e}\nv_mul_f32 v{t+e+1}, {f2h(1/640)}, v{t+e+1}")
    for e in (0, 2):
        S(f"v_fma_f32 v{t+e+1}, -v{t+e}, v{t+e}, v{t+e+1}")
    for e in (0, 2):
        S(f"v_max_f32 v{t+e+1}, 0, v{t+e+1}")
    for e in (0, 2):
        S(f"v_add_f32 v{t+e+1}, {f2h(1e-5)}, v{t+e+1}")


def gelu_coef(S, t):
    mean_var(S, t)
    for e in range(2):
        S(f"v_rsq_f32 v{t+2*e}, v{t+2*e+1}")
    for e in range(2):
        S(f"v_rcp_f32 v{CO+3*e+1}, v{t+2*e+1}")
    for e in range(2):
        S(f"v_mul_f32 v{CO+3*e}, {f2h(K1)}, v{t+2*e}\nv_mov_b32 v{CO+3*e+2}, v{t+2*e+1}")
    for e in range(2):
        S(f"v_mul_f32 v{CO+3*e+1}, {f2h(0.044715)}, v{CO+3*e+1}")
    for e in range(2):
        S(f"v_mul_f32 v{CO+3*e+1}, v{CO+3*e+1}, v{CO+3*e}")


def coef_loads(S, layer, sub):
    if layer == 0:
        S(tag_loads(T, vS1, "0", sub * 2048, sub * 2048 + 1024))
        return
    S(f"""s_sub_u32 s80, s{sW}, s{sTG}
    s_lshl_b32 s80, s80, 11
    s_sub_u32 s81, s{sS1}, s{sX}
    s_lshl_b32 s81, s81, 14
    s_add_u32 s80, s80, s81
    s_add_u32 s80, s80, {ST3 - ST2 + sub*8192:#x}""")
    S(tag_loads(T, vS2, "s80", 0, 256))


def coef(S, layer, sub):
    if layer == 0:
        tag_check(S, T, tag_loads(T, vS1, "0", sub * 2048, sub * 2048 + 1024))
    else:
        for i in range(4):
            S(f"v_add_f32 v{T+i}, v{T+i}, v{T+4+i}")
        rows_reduce(S, T)
        rows_gather(S, T)
    gelu_coef(S, T)


class Ring:
    def __init__(self):
        self.free = [BP + 8 * i for i in range(NB)]
        self.at = {}

    def load(self, S, key):
        kind, ks = key[0], key[-1]
        b = self.at[key] = self.free.pop(0)
        vb, r_ = (vXB, R_X) if kind == "X" else (vHB if ks < 12 else vHB2, R_H)
        S(f"buffer_load_dwordx4 {v(b,4)}, v{vb}, {R(r_)}, s{sKS+ks} offen sc1")
        S(f"buffer_load_dwordx4 {v(b+4,4)}, v{vb}, {R(r_)}, s{sKS+ks} offen offset:1024 sc1")

    def swap(self, S, key):
        b = self.at[key]
        S(f"v_swap_b32 v{b+2}, v{b+4}\nv_swap_b32 v{b+3}, v{b+5}")

    def release(self, key):
        self.free.append(self.at.pop(key))


def a_read(S, f):
    ks, i = divmod(f % 140, 7)
    p = wpos(ks)
    S(f"ds_read_b128 {v(AP + 4*(f % NA), 4)}, v{vA0 + p//9} offset:{(p % 9)*7168 + i*1024}")


def g1(S, ring, layer, sub):
    acc = ACCS[sub]
    f0 = 140 * sub
    if sub == 0:
        for f in range(NA - 1):
            a_read(S, f)
        ring.swap(S, ("X", 0, 0))
    for ks in range(20):
        b = ring.at[("X", sub, ks)]
        for i in range(7):
            f = f0 + 7 * ks + i
            A = v(AP + 4 * (f % NA), 4)
            for tt in range(2):
                d = v(acc + 8 * i + 4 * tt, 4)
                S(f"v_mfma_f32_16x16x32_bf16 {d}, {A}, {v(b+4*tt,4)}, {d if ks else 0}")
                if tt == 0 and f + NA - 1 < 280:
                    fn = f + NA - 1
                    if layer == 0 and fn < 140 and fn % 28 == 0:
                        S.need(f"W1L{fn//28}")
                        S.wait_tag(f"W1L{fn//28}")
                        S("s_barrier")
                        stamp(S, f"w1l{fn//28}")
                    a_read(S, fn)
                if tt == 1 and i == 0:
                    if ks:
                        ring.release(("X", sub, ks - 1))
                    elif sub:
                        ring.release(("X", 0, 19))
                    kn = 20 * sub + ks + NB - 1
                    if kn == 20:
                        S.need("XQ")
                        stamp(S, f"xq{layer}")
                        retarget(S, R_X, (X1, X3)[layer] + XSUB)
                    if kn < 40:
                        ring.load(S, ("X",) + divmod(kn, 20))
                if tt == 1 and i == 4 and 20 * sub + ks + 1 < 40:
                    ring.swap(S, ("X",) + divmod(20 * sub + ks + 1, 20))
    if sub:
        ring.release(("X", 1, 19))


def gelu(S, g, u, n, e):
    ca, cb, cc = CO + 3 * e, CO + 3 * e + 1, CO + 3 * e + 2
    for op in ("v_mul_f32 v{t}, v{g}, v{g}", "v_fma_f32 v{t}, v{t}, v{cb}, v{ca}", "v_mul_f32 v{t}, v{t}, v{g}",
               "v_exp_f32 v{t}, v{t}", "v_mul_f32 v{g}, v{g}, v{u}", "v_fma_f32 v{t}, v{t}, v{cc}, v{cc}",
               "v_rcp_f32 v{t}, v{t}", "v_mul_f32 v{g}, v{g}, v{t}"):
        for j in range(n):
            S(op.format(t=E1 + j, g=g + j, u=u + j, ca=ca, cb=cb, cc=cc))


def epi(S, layer, sub):
    acc = ACCS[sub]
    hb = (H1, H2)[layer] + sub * HSUB
    for tt in range(2):
        c = acc + 48 + 4 * tt
        gelu(S, c, c + 2, 2, tt)
        S(f"v_cvt_pk_bf16_f32 v{EO+tt}, v{c}, v{c+1}")
    S(f"""v_permlane16_swap_b32 v{EO}, v{EO+1}
    s_mov_b32 s80, {hb:#x}
    buffer_store_dwordx2 {v(EO,2)}, v{vHS7}, {R(R_WS)}, s80 offen sc1""", tag="H")
    for p in range(3):
        for tt in range(2):
            c = acc + 16 * p + 4 * tt
            gelu(S, c, c + 8, 4, tt)
            S(f"v_cvt_pk_bf16_f32 v{EO+2*tt}, v{c}, v{c+1}\nv_cvt_pk_bf16_f32 v{EO+2*tt+1}, v{c+2}, v{c+3}")
        S(f"s_mov_b32 s80, {hb + 4096*p:#x}")
        S(f"buffer_store_dwordx4 {v(EO,4)}, v{vHS}, {R(R_WS)}, s80 offen sc1", tag="H")


def h_line(S, layer, sub, sset, sshard, stg):
    S(f"""s_lshl_b32 s80, s{sset}, 3
    s_add_u32 s80, s80, s{sshard}
    s_lshl_b32 s80, s80, 2
    s_add_u32 s80, s80, s{stg}
    s_lshl_b32 s80, s80, 7
    s_add_u32 s80, s80, {CNT + (L_H + 256*layer + 16*sub)*128}""")


def h_signal(S, layer, sub):
    S(f"s_lshr_b32 s81, s{sR1}, 3")
    h_line(S, layer, sub, sS1, 81, sW)
    stamp(S, f"hs{layer}{sub}")
    S.wait_tag("H")
    signal_w(S, 80, vSEL, PT)
    stamp(S, f"ht{layer}{sub}")


def h_poll(S, layer, sub):
    h_line(S, layer, sub, sX, sW, sTG)
    poll_issue(S, PT, vSEL, 80)


def g2_pre(S, ring, layer, sub):
    poll_check(S, PT, 8, 1)
    retarget(S, R_H, (H1, H2)[layer] + sub * HSUB)
    for ks in range(len(ring.free) - 1):
        ring.load(S, ("H", sub, ks))
    acc = ACCS[sub]
    for d, base in ((acc + 40, (X1, X3)[layer]), (acc + 48, YY))[:2 - layer]:
        S(f"""s_mov_b32 s80, {base + sub*XSUB:#x}
        buffer_load_dwordx4 {v(d,4)}, v{vXO}, {R(R_WS)}, s80 offen sc1
        buffer_load_dword v{d+4}, v{vXE}, {R(R_WS)}, s80 offen sc1""")


def g2(S, ring, sub):
    acc = ACCS[sub]
    nxt = len(ring.at)
    ring.swap(S, ("H", sub, 0))
    for ks in range(14):
        b = ring.at[("H", sub, ks)]
        for s_ in range(5):
            for tt in range(2):
                d = v(acc + 8 * s_ + 4 * tt, 4)
                S(f"v_mfma_f32_16x16x32_bf16 {d}, {wd_reg(5*ks+s_)}, {v(b+4*tt,4)}, {d if ks else 0}")
                if tt == 1 and s_ == 0:
                    if ks:
                        ring.release(("H", sub, ks - 1))
                    if nxt < 14:
                        ring.load(S, ("H", sub, nxt))
                        nxt += 1
                if tt == 1 and s_ == 3 and ks + 1 < 14:
                    ring.swap(S, ("H", sub, ks + 1))
    ring.release(("H", sub, 13))


def reduce4(S, sub, hook1=None, hook2=None):
    acc, Z = ACCS[sub], ACCS[1 - sub] + 16
    S(f"""s_lshl_b32 s80, s{sW}, 12
    v_add_u32 v{T}, s80, v{vL16}
    v_xor_b32 v{T+1}, 0x2000, v{T}""")
    for j in range(4):
        S(f"ds_write_b128 v{T}, {v(acc+16+4*j,4)} offset:{1024*j}")
    S(f"""v_xor_b32 v{T+2}, 0x3000, v{T}
    v_lshrrev_b32 v{T+3}, 4, v{vL}
    v_xor_b32 v{T+3}, 2, v{T+3}
    v_and_b32 v{T+4}, 0xf0, v{vL16}
    v_lshl_add_u32 v{T+3}, v{T+3}, 12, v{T+4}
    s_lshl_b32 s80, s{sW}, 8
    v_add_u32 v{T+3}, s80, v{T+3}""")
    if hook1:
        hook1(S)
    S.wait_ds()
    S("s_barrier")
    for j in (2, 3, 0, 1):
        S(f"ds_read_b128 {v(Z+4*j,4)}, v{T+1} offset:{1024*j}")
    for j in (2, 3):
        for h in (0, 2):
            S(f"v_pk_add_f32 {v(acc+4*j+h,2)}, {v(acc+4*j+h,2)}, {v(Z+4*j+h,2)}")
    S.wait_ds()
    for j in range(2):
        S(f"ds_write_b128 v{T+1}, {v(acc+8+4*j,4)} offset:{1024*j}")
    for j in range(2):
        S(f"ds_write_b128 v{T+1}, {v(acc+32+4*j,4)} offset:{2048 + 1024*j}")
    for j in (0, 1):
        for h in (0, 2):
            S(f"v_pk_add_f32 {v(acc+4*j+h,2)}, {v(acc+4*j+h,2)}, {v(Z+4*j+h,2)}")
    XR = acc + 40
    for j in range(4):
        t = E1 + 2 * (j & 1)
        cvt_lo(S, t, XR + j)
        cvt_hi(S, t + 1, XR + j)
        S(f"v_pk_add_f32 {v(acc+2*j,2)}, {v(acc+2*j,2)}, {v(t,2)}")
    if hook2:
        hook2(S)
    S.wait_ds()
    S("s_barrier")
    for j in range(2):
        S(f"ds_read_b128 {v(Z+8+4*j,4)}, v{T+3} offset:{2048 + 1024*j}")
    for j in range(2):
        S(f"ds_read_b128 {v(Z+4*j,4)}, v{T+2} offset:{1024*j}")
    cvt_lo(S, acc + 8, XR + 4)
    cvt_hi(S, acc + 9, XR + 4)
    for j in range(4):
        S(f"v_permlane32_swap_b32 v{Z+8+j}, v{Z+12+j}")
    for h in (0, 2):
        S(f"v_pk_add_f32 {v(Z+8+h,2)}, {v(Z+8+h,2)}, {v(Z+12+h,2)}")
    for j in range(2):
        for h in (0, 2):
            S(f"v_pk_add_f32 {v(acc+4*j+h,2)}, {v(acc+4*j+h,2)}, {v(Z+4*j+h,2)}")
    for j in range(2):
        S(f"v_permlane16_swap_b32 v{Z+8+j}, v{Z+10+j}")
    S(f"v_pk_add_f32 {v(acc+8,2)}, {v(acc+8,2)}, {v(Z+8,2)}")
    S(f"v_pk_add_f32 {v(acc+8,2)}, {v(acc+8,2)}, {v(Z+10,2)}")


def stats(S, sub, lds_off, base):
    acc, A = ACCS[sub], T
    for e in range(2):
        S(f"v_add_f32 v{A+2*e}, v{acc+4*e}, v{acc+4*e+1}\nv_mul_f32 v{A+2*e+1}, v{acc+4*e}, v{acc+4*e}")
    for e in range(2):
        S(f"v_fmac_f32 v{A+2*e+1}, v{acc+4*e+1}, v{acc+4*e+1}")
    for j in (2, 3):
        for e in range(2):
            r_ = acc + 4 * e + j
            S(f"v_add_f32 v{A+2*e}, v{A+2*e}, v{r_}\nv_fmac_f32 v{A+2*e+1}, v{r_}, v{r_}")
    S(f"""v_and_b32 v{A+4}, 0xf0, v{vL16}
    v_lshrrev_b32 v{A+5}, 4, v{vL}""")
    rows_reduce(S, A, f"""v_add_f32 v{A}, v{A}, v{acc+8}
    v_fmac_f32 v{A+1}, v{acc+8}, v{acc+8}
    v_add_f32 v{A}, v{A}, v{acc+9}
    v_fmac_f32 v{A+1}, v{acc+9}, v{acc+9}
    v_lshl_add_u32 v{A+4}, v{A+5}, 2, v{A+4}
    s_lshl_b32 s80, s{sW}, 8
    v_add_u32 v{A+4}, s80, v{A+4}""")
    S(f"""ds_write_b32 v{A+4}, v{A} offset:{lds_off}
    v_lshlrev_b32 v{A+4}, 2, v{vL}
    s_lshl_b32 s80, s{sX}, 14
    s_lshl_b32 s81, s{sR}, 8
    s_add_u32 s80, s80, s81
    s_add_u32 s80, s80, {base:#x}
    s_cmp_eq_u32 s{sW}, 0
    s_cselect_b32 s80, s80, {OOB:#x}
    v_add_u32 v{A+5}, s80, v{A+4}""")
    S.wait_ds()
    S("s_barrier")
    for j in range(4):
        S(f"ds_read_b32 v{A+j}, v{A+4} offset:{lds_off + 256*j}")
    S(f"""v_add_f32 v{A}, v{A}, v{A+1}
    v_add_f32 v{A+2}, v{A+2}, v{A+3}
    v_add_f32 v{A}, v{A}, v{A+2}
    v_or_b32 v{A}, 1, v{A}
    buffer_store_dword v{A}, v{A+5}, {R(R_WS)}, 0 offen sc1""", tag="X3")


def st2_loads(sub):
    return tag_loads(T, vS2, "0" if sub == 0 else f"s{sKS+1}", 0, 256)


def x3_task(S, sub):
    acc, t = ACCS[sub], T
    YR = acc + 48
    stamp(S, f"x3a{sub}")
    tag_check(S, t, st2_loads(sub))
    stamp(S, f"x3b{sub}")
    rows_reduce(S, t)
    rows_gather(S, t)
    mean_var(S, t)
    for e in (0, 2):
        S(f"v_rsq_f32 v{t+e+1}, v{t+e+1}")
    S("s_mov_b32 vcc_lo, 0\ns_mov_b32 vcc_hi, -1")
    for e in (0, 2):
        S(f"v_mul_f32 v{t+e}, v{t+e}, v{t+e+1}")
    S(f"v_cndmask_b32 v{t+5}, v{t+1}, v{t+3}, vcc\nv_cndmask_b32 v{t+4}, v{t}, v{t+2}, vcc")
    u = t + 6
    for j in range(5):
        e = 2 * (j >> 1)
        cvt_lo(S, u, YR + j)
        cvt_hi(S, u + 1, YR + j)
        for h in range(2):
            S(f"v_fma_f32 v{u+2+h}, v{acc+2*j+h}, v{t+e+1}, -v{t+e}")
        for h in range(2):
            S(f"v_fmac_f32 v{acc+2*j+h}, v{u+2+h}, v{u+h}")
        S(f"v_cvt_pk_bf16_f32 v{YR+j}, v{acc+2*j}, v{acc+2*j+1}")
    S(f"""s_mov_b32 s80, {X3 + sub*XSUB:#x}
    buffer_store_dwordx4 {v(YR,4)}, v{vXO}, {R(R_WS)}, s80 offen sc1
    buffer_store_dword v{YR+4}, v{vXE}, {R(R_WS)}, s80 offen sc1""", tag="X3")
    stats(S, sub, LST + 1024, ST3 + sub * 8192)


def x3_signal(S, sub):
    S(f"""s_lshl_b32 s80, s{sX}, 3
    s_add_u32 s80, s80, s{sTG}
    s_lshl_b32 s80, s80, 2
    s_add_u32 s80, s80, s{sW}
    s_lshl_b32 s80, s80, 7
    s_add_u32 s80, s80, {CNT + (L_X3 + 16*sub)*128}""")
    stamp(S, f"x3c{sub}")
    S.wait_tag("X3")
    signal_w(S, 80, vSEL, PT)
    stamp(S, f"x3d{sub}")


def x_poll(S, layer, sub, pt=PT, pl=vPL):
    if layer == 0:
        S(f"s_and_b32 s80, s{sS1}, 3\ns_lshl_b32 s80, s80, 11\ns_add_u32 s80, s80, {CNT + (L_X1 + 64*sub)*128}")
    else:
        S(f"""s_lshl_b32 s80, s{sS1}, 3
        s_add_u32 s80, s80, s{sW}
        s_lshl_b32 s80, s80, 9
        s_add_u32 s80, s80, {CNT + (L_X3 + 16*sub)*128}""")
    poll_issue(S, pt, pl, 80)


def x_check(S, layer, pt=PT):
    if layer == 0:
        poll_check(S, pt, 10, 0xffff)
    else:
        poll_check(S, pt, 8, 0xf)


def g1_pre(S, ring):
    for ks in range(NB - 1):
        ring.load(S, ("X", 0, ks))


def out_stage(S, sub):
    acc = ACCS[sub]
    lo = LOUT + 8192 * sub
    for j in range(5):
        S(f"v_cvt_pk_bf16_f32 v{acc+10+j}, v{acc+2*j}, v{acc+2*j+1}")
    S(f"""v_and_b32 v{T}, 15, v{vL}
    v_lshrrev_b32 v{T+1}, 4, v{vL}
    v_mul_u32_u24 v{T}, 320, v{T}
    s_lshl_b32 s80, s{sW}, 5
    v_lshl_add_u32 v{T+2}, v{T+1}, 3, v{T}
    v_add_u32 v{T+2}, s80, v{T+2}
    ds_write2_b64 v{T+2}, {v(acc+10,2)}, {v(acc+12,2)} offset0:{0} offset1:{20}
    v_lshrrev_b32 v{T+3}, 1, v{T+1}
    v_mul_u32_u24 v{T+3}, 160, v{T+3}
    v_and_b32 v{T+1}, 1, v{T+1}
    v_lshl_add_u32 v{T+3}, v{T+1}, 2, v{T+3}
    s_lshl_b32 s80, s{sW}, 3
    v_add3_u32 v{T+3}, v{T+3}, v{T}, s80
    ds_write_b32 v{T+3}, v{acc+14} offset:{lo + 128}
    v_lshrrev_b32 v{T}, 3, v{vL}
    v_and_b32 v{T+1}, 7, v{vL}
    s_mul_i32 s80, s{sW}, 1280
    v_mul_u32_u24 v{T+2}, 160, v{T}
    v_add_u32 v{T+2}, s80, v{T+2}
    v_lshl_add_u32 v{T+3}, v{T+1}, 2, v{T+2}
    v_lshl_add_u32 v{T+2}, v{T+1}, 4, v{T+2}
    s_lshl_b32 s80, s{sX}, 4
    s_lshl_b32 s81, s{sTG}, 2
    s_add_u32 s80, s80, s81
    s_add_u32 s80, s80, s{sW}
    s_mul_i32 s80, s80, {8*1280}
    s_mul_i32 s81, s{sDB}, 160
    s_add_u32 s80, s80, s81
    v_mul_u32_u24 v{T}, 1280, v{T}
    v_add_u32 v{T}, s80, v{T}
    v_lshl_add_u32 v{T+4}, v{T+1}, 2, v{T}
    v_lshl_add_u32 v{T}, v{T+1}, 4, v{T}""".replace(f"v_add_u32 v{T+2}, s80, v{T+2}\n    ds_write2", f"s_add_u32 s80, s80, {lo}\n    v_add_u32 v{T+2}, s80, v{T+2}\n    ds_write2", 1))
    srd(S, R_O, P_OUT, 2048 * 1280)
    S.wait_ds()
    S(f"""s_barrier
    ds_read_b128 {v(T+8,4)}, v{T+2} offset:{lo}
    ds_read_b32 v{T+12}, v{T+3} offset:{lo + 128}
    s_mov_b32 s80, {sub*1024*1280}
    buffer_store_dwordx4 {v(T+8,4)}, v{T}, {R(R_O)}, s80 offen
    buffer_store_dword v{T+12}, v{T+4}, {R(R_O)}, s80 offen offset:128""")


def split(s, n):
    a_, b_ = Stream(), Stream()
    c = 0
    for k, i in enumerate(s.L):
        if c >= n:
            a_.L, b_.L = s.L[:k], s.L[k:]
            return a_, b_
        c += i.cost if i.kind not in ('pseudo', 'label', 'dir') else 0
    return s, b_


def mark(name):
    s = Stream()
    s.have(name)
    return s


P = dict(epiP=3, epiQ_pre=130, epiQ=4, hsigP=235, hpollP=268, x3_start=36, x3Q_start=60)


def ffn(S, ring, stop_at):
    for layer in range(2):
        print("layer", layer)
        stamp(S, f"A{layer}")
        if layer == 0:
            segs = [(0, 3, new(st1_task, 0, T))]
            for m in (2, 3, 4):
                segs += [((m - 2) * 49 + 14 + 7 * i, 4, new(w1_dma1, m, i)) for i in range(7)]
                segs += [(0, 2, mark(f"W1L{m}"))]
                if m == 2:
                    segs += [(45, 2, new(st1_finish, T)), (80, 2, new(x1_line, 1, 80)), (80, 2, new(lambda s: (s.wait_tag("X1"), signal_w(s, 80, vSEL, PT))))]
            segs = [(-1, 0, mark("W1L1"))] + segs
            segs += [(165, 2, new(x_poll, 0, 1))]
            segs += [(168 + 3 * k, 3, new(wd_load1, q)) for k, q in enumerate(range(ring.wd_next, 70))]
        else:
            segs = [(P["x3Q_start"] - 40, 2, new(lambda s: s(st2_loads(1)))), (P["x3Q_start"], 3, new(x3_task, 1)), (150, 2, new(x3_signal, 1)),
                    (185, 2, new(x_poll, 1, 1))]
        segs += [(205, 2, new(x_check, layer)), (0, 2, mark("XQ")), (215, 2, new(coef_loads, layer, 0)), (250, 2, new(coef, layer, 0))]
        S.extend(weave(new(g1, ring, layer, 0), segs))
        stamp(S, f"B{layer}")
        segs = []
        e = new(epi, layer, 0)
        if layer == 0:
            e1, e = split(e, 60)
            segs += [(0, 3, new(st1_task, 1, T)), (0, P["epiP"], e1), (0, P["epiP"], new(st1_finish, T))]
        segs += [(0, P["epiP"], e), (200, 2, new(coef_loads, layer, 1)), (P["hsigP"], 2, new(h_signal, layer, 0)), (235, 2, new(coef, layer, 1)),
                 (P["hpollP"], 2, new(h_poll, layer, 0))]
        S.extend(weave(new(g1, ring, layer, 1), segs))
        stop_at(S, f"g1_{layer}")
        stamp(S, f"C{layer}")
        ring.free += [AP, AP + 8, AP + 16]
        e0, e = split(new(epi, layer, 1), 40)
        S.extend(e0)
        g2_pre(S, ring, layer, 0)
        e1, e = split(e, P["epiQ_pre"])
        S.extend(e1)
        stamp(S, f"C{layer}m")
        S.extend(weave(new(g2, ring, 0), [(0, P["epiQ"], e), (125, 2, new(h_signal, layer, 1))]))
        stamp(S, f"D{layer}")
        reduce4(S, 0, hook2=lambda s: h_poll(s, layer, 1))
        if layer == 0:
            stats(S, 0, LST, ST2)
        stamp(S, f"D{layer}m")
        g2_pre(S, ring, layer, 1)
        if layer == 1:
            out_stage(S, 0)
        stamp(S, f"E{layer}")
        segs = []
        if layer == 0:
            segs = [(P["x3_start"] - 30, 2, new(lambda s: s(st2_loads(0)))), (P["x3_start"], 3, new(x3_task, 0))]
        S.extend(weave(new(g2, ring, 1), segs))
        for r_ in (AP, AP + 8, AP + 16):
            ring.free.remove(r_)
        stamp(S, f"F{layer}")
        if layer == 0:
            reduce4(S, 1, hook2=lambda s: x3_signal(s, 0))
            stats(S, 1, LST, ST2 + 8192)
            stamp(S, f"F{layer}m")
            x_poll(S, 1, 0)
            retarget(S, R_X, X3)
            x_check(S, 1)
            g1_pre(S, ring)
        else:
            reduce4(S, 1)
            out_stage(S, 1)
        stop_at(S, f"g2_{layer}")
    S("s_waitcnt vmcnt(0)")
    ts_flush(S, E1)
```

```python
from common import *

vTID, vL = 0, 1
vKB, vKA, vSO, vLW, vUO, vLR = 2, 3, 4, 5, 6, 7
vT0, vT1 = 8, 9
KR, VR, SR, QR = 10, 32, 48, 56
vRDY = 66
ROLE = 68
KF, SF, UF = 164, 208, 224
QF = 164
LDS_QST = 0


def prologue(S):
    S(f"""s_cmp_ge_u32 s2, 256
    s_cbranch_scc1 L_end
    s_load_dwordx16 s[4:19], s[0:1], 0
    s_load_dwordx8 s[20:27], s[0:1], 64
    s_load_dwordx2 s[28:29], s[0:1], 96
    v_lshrrev_b32 v{vT0}, 6, v0
    v_and_b32 v{vL}, 63, v0
    s_and_b32 s{sX}, s2, 7
    s_lshr_b32 s{sR}, s2, 3
    v_readfirstlane_b32 s{sW}, v{vT0}
    s_lshr_b32 s{sS1}, s{sX}, 2
    s_lshl_b32 s{sS1}, s{sS1}, 2
    s_lshr_b32 s80, s{sR}, 3
    s_add_u32 s{sS1}, s{sS1}, s80
    s_and_b32 s{sR1}, s{sX}, 3
    s_lshl_b32 s{sR1}, s{sR1}, 3
    s_and_b32 s80, s{sR}, 7
    s_add_u32 s{sR1}, s{sR1}, s80
    s_mul_i32 s{sTL}, s{sR1}, 7
    s_mul_i32 s80, s{sR1}, 6
    s_add_u32 s80, s80, 24
    s_min_u32 s{sTL}, s{sTL}, s80
    s_lshr_b32 s{sTG}, s{sR}, 3
    s_and_b32 s{sDB}, s{sR}, 7""")
    for i in range(20):
        S(f"s_mov_b32 s{sKS+i}, {i*8192}")
    S(f"""s_movk_i32 s{sT0}, 5120
    s_waitcnt lgkmcnt(0)""")
    if WSOFF:
        S(f"s_add_u32 s{P_WS}, s{P_WS}, {WSOFF:#x}\ns_addc_u32 s{P_WS+1}, s{P_WS+1}, 0")
    srd(S, R_WS, P_WS, 0x10000000 - WSOFF)
    srd(S, R_DBG, P_DBG, 256)


def kv_addr(S, lds_stage, lds_stride):
    srd(S, R_A, P_K, 2048 * 1280)
    srd(S, R_B, P_V, 2048 * 1280)
    srd(S, R_C, P_SH, 640 * 8)
    S(f"""s_lshr_b32 s80, s2, 5
    s_and_b32 s81, s2, 31
    s_lshl_b32 s80, s80, 8
    s_lshl_b32 s82, s{sW}, 6
    s_add_u32 s80, s80, s82
    s_mul_i32 s82, s81, {64*1280}
    s_add_u32 s82, s82, s80
    v_lshrrev_b32 v{vT0}, 3, v{vL}
    v_and_b32 v{vT1}, 7, v{vL}
    v_mul_u32_u24 v{vKB}, {8*1280}, v{vT0}
    v_lshl_add_u32 v{vKB}, v{vT1}, 3, v{vKB}
    v_add_u32 v{vKB}, s82, v{vKB}
    v_subrev_u32 v{vKA}, 3840, v{vKB}
    s_lshl_b32 s82, s80, 2
    v_lshl_add_u32 v{vSO}, v{vT1}, 5, s82""")
    return lambda S: S(f"""s_lshl_b32 s80, s80, 11
    s_lshl_b32 s81, s81, 7
    s_sub_u32 s80, s80, s81
    s_add_u32 s80, s80, {U_ + 3968:#x}
    v_lshlrev_b32 v{vUO}, 14, v{vT0}
    v_lshl_add_u32 v{vUO}, v{vT1}, 4, v{vUO}
    v_add_u32 v{vUO}, s80, v{vUO}
    s_mul_i32 s80, s{sW}, {lds_stride}
    s_add_u32 s80, s80, {lds_stage}
    v_xor_b32 v{vLR}, v{vT0}, v{vT1}
    v_xor_b32 v{vLW}, 7, v{vLR}
    v_lshlrev_b32 v{vLR}, 4, v{vLR}
    v_lshlrev_b32 v{vLW}, 4, v{vLW}
    v_lshl_add_u32 v{vLR}, v{vT0}, 7, v{vLR}
    v_lshl_add_u32 v{vLW}, v{vT1}, 7, v{vLW}
    v_add_u32 v{vLR}, s80, v{vLR}
    v_add_u32 v{vLW}, s80, v{vLW}""")


def zero_flags(S):
    z = KF
    S("\n".join(f"v_mov_b32 v{z+i}, 0" for i in range(4)))
    S(f"""s_lshl_b32 s80, s{sS1}, 12
    s_lshr_b32 s81, s{sW}, 1
    s_lshl_b32 s82, s81, 10
    s_add_u32 s80, s80, s82
    s_lshl_b32 s82, s{sR1}, 5
    s_add_u32 s80, s80, s82
    s_and_b32 s83, s{sW}, 1
    s_lshl_b32 s82, s83, 4
    s_add_u32 s80, s80, s82
    s_add_u32 s80, s80, {ST1:#x}
    v_lshl_add_u32 v{vT0}, v{vL}, 11, s80
    s_lshl_b32 s80, s{sX}, 14
    s_lshl_b32 s82, s81, 13
    s_add_u32 s80, s80, s82
    s_lshl_b32 s82, s{sR}, 8
    s_add_u32 s80, s80, s82
    s_lshl_b32 s82, s83, 7
    s_add_u32 s80, s80, s82
    s_add_u32 s80, s80, {ST2 - 128:#x}
    v_lshl_add_u32 v{vT1}, v{vL}, 4, s80
    v_cmp_gt_u32 vcc, 2, v{vL}
    v_cndmask_b32 v{vT1}, v{vT1}, v{vT0}, vcc
    v_subrev_u32 v{z+4}, 2, v{vL}
    v_cmp_gt_u32 vcc, 6, v{z+4}
    v_mov_b32 v{vT0}, {OOB:#x}
    v_cndmask_b32 v{vT1}, v{vT1}, v{vT0}, vcc
    v_cmp_lt_u32 vcc, 15, v{vL}
    v_cndmask_b32 v{vT1}, v{vT1}, v{vT0}, vcc
    buffer_store_dwordx4 {v(z,4)}, v{vT1}, {R(R_WS)}, 0 offen sc1""")


def kv_loads(S):
    S(f"buffer_load_dwordx4 {v(SR,4)}, v{vSO}, {R(R_C)}, 0 offen")
    S(f"buffer_load_dwordx4 {v(SR+4,4)}, v{vSO}, {R(R_C)}, 0 offen offset:16")
    for i in range(11):
        if i < 3:
            S(f"buffer_load_dwordx2 {v(KR+2*i,2)}, v{vKA}, {R(R_A)}, 0 offen offset:{1280*i} {NT}")
        else:
            j = i - 3
            so = "0" if j < 4 else f"s{sT0}"
            S(f"buffer_load_dwordx2 {v(KR+2*i,2)}, v{vKB}, {R(R_A)}, {so} offen offset:{1280*(j&3)} {NT}")
            S(f"buffer_load_dwordx2 {v(VR+2*j,2)}, v{vKB}, {R(R_B)}, {so} offen offset:{1280*(j&3)} {NT}")
    return 21


def ready_load(S, vRDY=vRDY):
    S(f"v_mov_b32 v{vRDY}, 0")
    S(f"buffer_load_dword v{vRDY}, v{vRDY}, {R(R_DBG)}, 0 offen sc1")


def clear_counters(S):
    l, l2 = lab("nr"), lab("nr")
    S.drain()
    S(f"""s_lshl_b32 s80, s2, 2
    s_add_u32 s80, s80, s{sW}
    s_cmp_lg_u32 s80, {248*4}
    s_cbranch_scc1 {l}
    v_lshlrev_b32 v{vT0}, 7, v0
    v_mov_b32 v{vT1}, 0
    buffer_store_dword v{vT1}, v{vT0}, {R(R_WS)}, 0 offen sc1
    buffer_store_dword v{vT1}, v{vT0}, {R(R_WS)}, s{sKS+1} offen sc1
    v_mov_b32 v{vT0}, 0
    v_mov_b32 v{vT1+1}, 1
    s_mov_b64 exec, 1
    s_waitcnt vmcnt(0)
    buffer_store_dword v{vT1+1}, v{vT0}, {R(R_DBG)}, 0 offen sc1
    s_mov_b64 exec, -1
    {l}:
    s_cmp_lg_u32 s2, 249
    s_cbranch_scc1 {l2}
    v_lshlrev_b32 v{vT0}, 7, v0
    v_mov_b32 v{vT1}, 0""")
    for j in range(4):
        S(f"buffer_store_dword v{vT1}, v{vT0}, {R(R_WS)}, s{sKS+2+4*j} offen sc1")
    S(f"{l2}:")
    S.reset()


def ready_check(S, vr=vRDY):
    l, b = lab("rc"), lab("rcb")
    S(f"""v_readfirstlane_b32 s80, v{vr}
    s_cmp_eq_u32 s80, 0
    s_cbranch_scc1 {l}
    {b}:""")
    COLD.reset()
    COLD(f"""{l}:
    s_mov_b32 s{sBOUND}, {SPIN}
    {l}_a:
    v_mov_b32 v{vr}, 0
    buffer_load_dword v{vr}, v{vr}, {R(R_DBG)}, 0 offen sc1
    s_waitcnt vmcnt(0)
    v_readfirstlane_b32 s80, v{vr}
    s_cmp_lg_u32 s80, 0
    s_cbranch_scc1 {b}
    s_sub_u32 s{sBOUND}, s{sBOUND}, 1
    s_cbranch_scc0 {l}_a
    s_branch L_end""")


def cvt_lo(S, d, s):
    S(f"v_lshlrev_b32 v{d}, 16, v{s}")


def cvt_hi(S, d, s):
    S(f"v_and_b32 v{d}, 0xffff0000, v{s}")


def kv_compute(S, mid=None):
    for c in range(4):
        for j in range(4):
            (cvt_hi if j & 1 else cvt_lo)(S, SF + 4 * j + c, SR + 2 * c + (j >> 1))

    def cvk(i):
        for c in range(4):
            (cvt_hi if c & 1 else cvt_lo)(S, KF + 4 * i + c, KR + 2 * i + (c >> 1))
    for i in range(3):
        cvk(i)
    for tt in range(8):
        cvk(tt + 3)
        u = UF + 4 * tt
        for h in (0, 2):
            S(f"v_pk_mul_f32 {v(u+h,2)}, {v(KF+4*tt+h,2)}, {v(SF+12+h,2)}")
        for j in (2, 1, 0):
            for h in (0, 2):
                S(f"v_pk_fma_f32 {v(u+h,2)}, {v(KF+4*(tt+3-j)+h,2)}, {v(SF+4*j+h,2)}, {v(u+h,2)}")
        for c in range(4):
            (cvt_hi if c & 1 else cvt_lo)(S, KF + 4 * tt + c, VR + 2 * tt + (c >> 1))
        if mid:
            mid(S, tt)
        for h in (0, 2):
            S(f"v_pk_mul_f32 {v(u+h,2)}, {v(u+h,2)}, {v(KF+4*tt+h,2)}")
    for c in range(4):
        o = KR + 2 + 4 * c
        for e in range(4):
            S(f"v_cvt_pk_bf16_f32 v{o+e}, v{UF+4*(7-2*e)+c}, v{UF+4*(6-2*e)+c}")
        S(f"ds_write_b128 v{vLW}, {v(o,4)} offset:{1024*c}")
    ready_load(S)
    for c in range(4):
        S(f"ds_read_b128 {v(VR+4*c,4)}, v{vLR} offset:{1024*c}")
    for c in range(4):
        S(f"buffer_store_dwordx4 {v(VR+4*c,4)}, v{vUO}, {R(R_WS)}, 0 offen sc1", tag="U")
        if c < 3:
            S(f"v_add_u32 v{vUO}, 4096, v{vUO}")


def f2h(x):
    import struct
    return hex(struct.unpack("<I", struct.pack("<f", x))[0])


QR0 = 16
sP = 84


def q_dma(S):
    srd(S, R_D, P_Q, 2048 * 1280)
    t = 2
    S(f"""s_lshl_b32 s80, s{sP}, 2
    s_add_u32 s80, s80, s{sW}
    s_mul_i32 s81, s80, 20480
    v_lshrrev_b32 v{vT0}, 3, v{vL}
    v_and_b32 v{vT1}, 7, v{vL}
    v_and_b32 v{t+1}, 6, v{vT0}
    v_xor_b32 v{t+1}, v{t+1}, v{vT1}
    v_mul_u32_u24 v{t}, 2560, v{vT0}
    v_lshl_add_u32 v{t}, v{t+1}, 4, v{t}
    v_add_u32 v{t}, s81, v{t}
    s_mul_i32 s82, s{sW}, 20480
    s_add_u32 s82, s82, 1024""")
    for blk in range(10):
        for par in range(2):
            S(f"""s_add_i32 m0, s82, {blk*2048 + par*1024 - (par*1280 + blk*128)}
            buffer_load_dwordx4 v{t}, {R(R_D)}, 0 offen offset:{par*1280 + blk*128} {NT} lds""", tag="QL")
    S(f"""v_lshrrev_b32 v3, 1, v{vT0}
    v_and_b32 v4, 6, v{vT1}
    v_xor_b32 v3, v3, v4
    v_lshlrev_b32 v3, 4, v3
    v_lshl_add_u32 v3, v{vT1}, 7, v3
    v_and_b32 v4, 1, v{vT0}
    v_lshl_add_u32 v3, v4, 3, v3
    v_add_u32 v3, s82, v3
    v_xor_b32 v4, 64, v3
    s_cmp_lt_u32 s{sP}, 32
    s_cselect_b32 s83, 0, {OOB:#x}
    s_add_u32 s81, s81, {QZ:#x}
    s_or_b32 s81, s81, s83
    v_lshl_add_u32 v5, v{vL}, 4, s81
    v_add_u32 v7, 4096, v5
    s_lshl_b32 s80, s80, 7
    s_add_u32 s80, s80, {QS:#x}
    s_or_b32 s80, s80, s83
    v_lshl_add_u32 v6, v{vL}, 4, s80
    v_cmp_gt_u32 vcc, 8, v{vL}
    v_mov_b32 v{vT0}, {OOB:#x}
    v_cndmask_b32 v6, v{vT0}, v6, vcc""")


def q_task(S):
    A = 8
    S.wait_tag("QL")
    stamp(S, "qin")
    for it in range(20):
        blk, h = it >> 1, it & 1
        S(f"ds_read2st64_b64 {v(QR0+4*it,4)}, v{3+h} offset0:{4*blk} offset1:{4*blk+2}")
    S("s_mov_b32 s81, 0x3f803f80")
    for it in range(20):
        so = f"s{sKS + (it>>3)}"
        S(f"buffer_store_dwordx4 {v(QR0+4*it,4)}, v{7 if it & 4 else 5}, {R(R_WS)}, {so} offen offset:{1024*(it&3)} sc1", tag="QZ")
        for h in range(2):
            for e in range(2):
                r_ = QR0 + 4 * it + 2 * e + h
                first = it == 0 and h == 0
                S(f"v_dot2_f32_bf16 v{A+2*e}, v{r_}, s81, {'0' if first else 'v%d' % (A+2*e)}")
                S(f"v_dot2_f32_bf16 v{A+2*e+1}, v{r_}, v{r_}, {'0' if first else 'v%d' % (A+2*e+1)}")
    for i in range(4):
        S(f"v_add_f32_dpp v{A+i}, v{A+i}, v{A+i} row_ror:8 row_mask:0xf bank_mask:0xf")
    for op in ("v_permlane16_swap_b32", "v_permlane32_swap_b32"):
        for i in range(4):
            S(f"v_mov_b32 v{A+4+i}, v{A+i}")
        for i in range(4):
            S(f"{op} v{A+i}, v{A+4+i}")
        for i in range(4):
            S(f"v_add_f32 v{A+i}, v{A+i}, v{A+4+i}")
    for e in (0, 2):
        S(f"""v_mul_f32 v{A+4+e}, {f2h(1/640)}, v{A+e}
        v_mul_f32 v{A+e+1}, {f2h(1/640)}, v{A+e+1}
        v_fma_f32 v{A+e+1}, -v{A+4+e}, v{A+4+e}, v{A+e+1}
        v_max_f32 v{A+e+1}, 0, v{A+e+1}
        v_add_f32 v{A+e+1}, {f2h(1e-5)}, v{A+e+1}
        v_rsq_f32 v{A+e}, v{A+e+1}
        v_mul_f32 v{A+e+1}, -v{A+4+e}, v{A+e}""")
    S(f"buffer_store_dwordx4 {v(A,4)}, v6, {R(R_WS)}, 0 offen sc1", tag="QZ")


WR0 = 16
LDS_WD = 81920


def w_dma(S):
    S(f"""v_lshrrev_b32 v{vT0}, 3, v{vL}
    v_and_b32 v{vT1}, 7, v{vL}""")
    S(f"""s_and_b32 s85, s{sP}, 1
    s_lshr_b32 s86, s{sP}, 1
    s_cmp_eq_u32 s85, 0
    s_cselect_b32 s{R_A}, s{P_WG}, s{P_WU}
    s_cselect_b32 s{R_A+1}, s{P_WG+1}, s{P_WU+1}
    s_mov_b32 s{R_A+2}, {640*3456}
    s_mov_b32 s{R_A+3}, 0x00020000
    s_mul_i32 s80, s{sW}, {160*3456}
    s_lshl_b32 s81, s86, 7
    s_add_u32 s80, s80, s81
    v_and_b32 v3, 2, v{vT0}
    v_xor_b32 v3, v3, v{vT1}
    v_mul_u32_u24 v2, 3456, v{vT0}
    v_add_u32 v2, s80, v2
    v_xor_b32 v4, 4, v3
    v_lshl_add_u32 v4, v4, 4, v2
    v_lshl_add_u32 v2, v3, 4, v2
    s_mul_i32 s83, s{sW}, 20480""")
    for i in range(20):
        S(f"""s_add_u32 m0, s83, {i*1024}
        s_mov_b32 s80, {i*8*3456}
        buffer_load_dwordx4 v{4 if i & 1 else 2}, {R(R_A)}, s80 offen {NT} lds""", tag="W1R")
    G, r_, part = 10, 11, 12
    S(f"""v_lshrrev_b32 v{G}, 4, v{vL}
    v_bfe_u32 v{r_}, v{vL}, 2, 2
    v_bfe_u32 v{part}, v{vL}, 1, 1
    v_and_b32 v13, 1, v{vL}
    v_lshlrev_b32 v13, 3, v13
    s_lshl_b32 s80, s{sW}, 1
    v_add_u32 v2, s80, v{part}
    v_and_b32 v3, 1, v{G}
    v_lshlrev_b32 v3, 2, v3
    v_and_b32 v4, 2, v{r_}
    v_xor_b32 v2, v2, v3
    v_xor_b32 v2, v2, v4
    v_lshl_add_u32 v2, v2, 4, v13
    v_lshl_add_u32 v3, v{G}, 3, v{r_}
    v_lshl_add_u32 v2, v3, 7, v2
    v_add_u32 v3, 65536, v2
    s_lshl_b32 s81, s86, 3
    s_add_u32 s80, s80, s81
    s_mul_i32 s80, s80, 20480
    s_lshl_b32 s81, s85, 7
    s_add_u32 s80, s80, s81
    s_add_u32 s80, s80, {W1P:#x}
    v_and_b32 v5, 1, v{vT0}
    v_mul_u32_u24 v5, 20480, v5
    v_lshl_add_u32 v5, v{G}, 8, v5
    v_lshl_add_u32 v5, v{vT1}, 4, v5
    v_add_u32 v5, s80, v5
    v_add_u32 v6, 4096, v5""")


def w1_task(S, mid):
    A = 12
    S.wait_tag("W1R")
    S("s_barrier")
    stamp(S, "w1in")
    S("s_mov_b32 s80, 0x3f803f80\ns_mov_b32 s81, 0x00003f80\ns_mov_b32 s82, 0x3f800000")
    for ks in range(20):
        for hh in range(2):
            S(f"ds_read_b64_tr_b16 {v(WR0+4*ks+2*hh,2)}, v{2 + (ks>>4)} offset:{(ks&15)*4096 + hh*512}")
    for ks in range(20):
        for j in range(4):
            S(f"v_dot2_f32_bf16 v{A+j}, v{WR0+4*ks+j}, s80, {'0' if ks == 0 else 'v%d' % (A+j)}")
    S(f"""v_add_f32 v{A}, v{A}, v{A+1}
    v_add_f32 v{A+2}, v{A+2}, v{A+3}
    v_add_f32 v{A}, v{A}, v{A+2}
    v_mov_b32 v{A+1}, v{A}
    v_permlane16_swap_b32 v{A}, v{A+1}
    v_add_f32 v{A}, v{A}, v{A+1}
    v_mov_b32 v{A+1}, v{A}
    v_permlane32_swap_b32 v{A}, v{A+1}
    v_add_f32 v{A}, v{A}, v{A+1}
    v_mul_f32 v{A}, {f2h(-1/640)}, v{A}""")
    T = 100
    stamp(S, "w1sum")
    mid(S)
    for ks in range(20):
        for j in range(4):
            r_ = WR0 + 4 * ks + j
            S(f"v_dot2_f32_bf16 v{T+2*j}, v{r_}, s81, v{A}\nv_dot2_f32_bf16 v{T+2*j+1}, v{r_}, s82, v{A}")
        for j in range(4):
            S(f"v_cvt_pk_bf16_f32 v{WR0+4*ks+j}, v{T+2*j}, v{T+2*j+1}")
        S(f"buffer_store_dwordx4 {v(WR0+4*ks,4)}, v{6 if ks & 4 else 5}, {R(R_WS)}, s{sKS+(ks>>3)} offen offset:{1024*(ks&3)} sc1", tag="W1")


WDD, WDA, WDT = 124, 140, 144
LDS_WD = 135168


def wd_dma(S):
    t = WDT
    srd(S, R_C, P_WD, 1728 * 1280)
    S(f"""v_lshrrev_b32 v{t+1}, 3, v{vL}
    v_and_b32 v{t+2}, 7, v{vL}
    v_mul_u32_u24 v{t}, 1280, v{t+1}
    v_bfe_u32 v{t+1}, v{t+1}, 1, 1
    v_lshlrev_b32 v{t+1}, 2, v{t+1}
    v_xor_b32 v{t+1}, v{t+1}, v{t+2}
    v_lshl_add_u32 v{t}, v{t+1}, 4, v{t}
    v_lshrrev_b32 v{t+2}, 4, v{vL}
    v_and_b32 v{t+3}, 15, v{vL}
    v_lshlrev_b32 v{t+3}, 4, v{t+3}
    s_lshl_b32 s85, s{sW}, 12
    s_add_u32 s85, s85, {LDS_WD}
    s_mov_b32 s88, {54*5120 - 5120}""")
    for j in range(4):
        S(f"""s_lshl_b32 s80, s84, 2
        s_add_u32 s80, s80, {j}
        s_cmp_lt_u32 s80, 2160
        s_cselect_b32 s86, 0, {OOB:#x}
        s_mul_i32 s81, s80, 52429
        s_lshr_b32 s81, s81, 19
        s_mul_i32 s82, s81, 10
        s_sub_u32 s80, s80, s82
        s_mul_i32 s82, s81, 10240
        s_lshl_b32 s83, s80, 7
        s_add_u32 s82, s82, s83
        s_or_b32 s82, s82, s86
        s_add_u32 m0, s85, {1024*j}
        s_lshl_b32 s80, s80, 2
        buffer_load_dwordx4 v{t}, {R(R_C)}, s82 offen {NT} lds""", tag="WDR")
        S(f"""s_lshr_b32 s82, s81, 2
        s_mul_i32 s82, s82, 5120
        s_and_b32 s81, s81, 3
        s_lshl_b32 s81, s81, 8
        s_add_u32 s82, s82, s81
        s_add_u32 s82, s82, {WDP:#x}
        s_or_b32 s82, s82, s86
        v_add_u32 v{t+1}, s80, v{t+2}
        v_mul_u32_u24 v{t+4}, 52, v{t+1}
        v_lshrrev_b32 v{t+4}, 8, v{t+4}
        v_lshl_add_u32 v{t+1}, v{t+1}, 10, v{t+3}
        v_mad_u32_u24 v{t+1}, v{t+4}, s88, v{t+1}
        v_add_u32 v{WDA+j}, s82, v{t+1}""")
    S(f"""v_bfe_u32 v{t+1}, v{vL}, 2, 2
    v_bfe_u32 v{t+3}, v{vL}, 1, 1
    v_lshl_add_u32 v{t+2}, v{t+2}, 1, v{t+3}
    v_and_b32 v{t+3}, 2, v{t+1}
    v_lshlrev_b32 v{t+3}, 1, v{t+3}
    v_xor_b32 v{t+2}, v{t+2}, v{t+3}
    v_and_b32 v{t+3}, 1, v{vL}
    v_lshlrev_b32 v{t+3}, 3, v{t+3}
    v_lshl_add_u32 v{t+2}, v{t+2}, 4, v{t+3}
    v_lshl_add_u32 v{t+2}, v{t+1}, 7, v{t+2}
    v_add_u32 v{t+1}, s85, v{t+2}""")


def wd_task(S):
    S.wait_tag("WDR")
    for j in range(4):
        for hh in range(2):
            S(f"ds_read_b64_tr_b16 {v(WDD+4*j+2*hh,2)}, v{WDT+1} offset:{j*1024 + hh*512}")
    for j in range(4):
        S(f"buffer_store_dwordx4 {v(WDD+4*j,4)}, v{WDA+j}, {R(R_WS)}, 0 offen sc1", tag="U")
```

```python
import re

REG_RE = re.compile(r'\b([vas])\[(\d+):(\d+)\]|\b([vas])(\d+)\b|\b(vcc|exec|m0)(?:_lo|_hi)?\b')
TRANS = ('v_exp_f32', 'v_log_f32', 'v_rcp_f32', 'v_rsq_f32', 'v_sqrt_f32', 'v_sin_f32', 'v_cos_f32')
DPPW = ('quad_perm', 'row_shr', 'row_shl', 'row_ror', 'row_bcast', 'row_mirror', 'row_half_mirror', 'row_newbcast', 'wave_')


def regs_of(tok):
    out = []
    for m in REG_RE.finditer(tok):
        if m.group(1):
            out += [m.group(1) + str(i) for i in range(int(m.group(2)), int(m.group(3)) + 1)]
        elif m.group(4):
            out.append(m.group(4) + m.group(5))
        else:
            out.append(m.group(6))
    return out


def split_ops(s):
    ops, depth, cur = [], 0, ''
    for ch in s:
        if ch == '[':
            depth += 1
        if ch == ']':
            depth -= 1
        if ch == ',' and depth == 0:
            ops.append(cur.strip())
            cur = ''
        else:
            cur += ch
    if cur.strip():
        ops.append(cur.strip())
    return ops


class Ins:
    __slots__ = ('text', 'op', 'kind', 'rd', 'wr', 'srcc', 'tag', 'cost', 'meta')

    def __init__(self, text, tag=None, meta=None):
        self.text = text
        self.tag = tag
        self.meta = meta
        self.srcc = ()
        t = text.split(';')[0].strip()
        if t.endswith(':'):
            self.op, self.kind, self.rd, self.wr, self.cost = t, 'label', (), (), 0
            return
        if t.startswith('.') or t == '':
            self.op, self.kind, self.rd, self.wr, self.cost = t, 'dir', (), (), 0
            return
        sp = t.split(None, 1)
        op = sp[0]
        rest = sp[1] if len(sp) > 1 else ''
        ops = split_ops(rest)
        R = [regs_of(o) for o in ops]
        flat = lambda L: [r for x in L for r in x]
        self.op = op
        self.cost = 1
        k = None
        rd, wr = [], []
        if op.startswith('v_mfma'):
            k = 'mfma8' if '32x32' in op else 'mfma4'
            wr, rd = R[0], flat(R[1:])
            self.srcc = tuple(R[3])
        elif op.startswith('buffer_load') or op.startswith('global_load'):
            if re.search(r'\blds\b', rest) or 'load_lds' in op:
                k, rd = 'dma', flat(R) + ['m0']
            else:
                k, wr, rd = 'vld', R[0], flat(R[1:])
        elif op.startswith('buffer_store') or op.startswith('global_store'):
            k, rd = 'vst', flat(R)
        elif op.startswith('buffer_atomic') or op.startswith('global_atomic'):
            k, rd = 'vst', flat(R)
            assert not re.search(r'\bsc0\b', rest), "returning atomics unsupported"
        elif op.startswith('ds_read') or op.startswith('ds_bpermute') or op.startswith('ds_swizzle'):
            k, wr, rd = 'dsr', R[0], flat(R[1:])
        elif op.startswith('ds_'):
            k, rd = 'dsw', flat(R)
        elif op.startswith('s_load') or op == 's_memtime' or op == 's_memrealtime':
            k, wr, rd = 'smem', R[0], flat(R[1:])
        elif op == 's_waitcnt':
            k = 'wait'
        elif op == 's_nop':
            k = 'nop'
            self.cost = int(rest) + 1
        elif op in ('s_barrier', 's_setprio', 's_sleep', 's_endpgm'):
            k = 'sctl'
        elif op.startswith('s_cbranch') or op == 's_branch':
            k = 'branch'
            if 'vcc' in op:
                rd = ['vcc']
            if 'exec' in op:
                rd = ['exec']
        elif op.startswith('s_cmp') or op.startswith('s_bitcmp'):
            k, rd = 'salu', flat(R)
        elif op.startswith('s_'):
            k, wr, rd = 'salu', R[0], flat(R[1:])
            if 'saveexec' in op:
                wr = wr + ['exec']
                rd = rd + ['exec']
            if op.startswith('s_cmov') or op.startswith('s_addk') or op.startswith('s_mulk'):
                rd = rd + R[0]
        elif op.startswith('v_'):
            k = 'valu'
            if op.startswith('v_cmpx'):
                wr, rd = ['exec'] + R[0], flat(R[1:])
            elif op.startswith('v_permlane') and 'swap' in op:
                k = 'perm'
                wr = rd = flat(R)
            elif op.startswith('v_swap'):
                wr = rd = flat(R)
            elif op == 'v_nop':
                pass
            else:
                wr, rd = R[0], flat(R[1:])
                if op.startswith(('v_fmac', 'v_mac', 'v_dot2c', 'v_pk_fmac', 'v_writelane')):
                    rd = rd + R[0]
                if op.startswith(('v_add_co', 'v_sub_co', 'v_addc_co', 'v_subb_co')):
                    wr = R[0] + R[1]
                    rd = flat(R[2:])
                if op.startswith(TRANS):
                    k = 'trans'
                    self.cost = 2
                if op.startswith(('v_readfirstlane', 'v_readlane')):
                    k = 'rdlane'
                if any(w in rest for w in DPPW):
                    k = 'dpp'
                    rd = rd + R[0]
        else:
            raise ValueError("unknown op " + text)
        self.kind, self.rd, self.wr = k, tuple(rd), tuple(wr)


VALU_KINDS = ('valu', 'trans', 'dpp', 'perm', 'rdlane')


class Stream:
    def __init__(self):
        self.L = []

    def __call__(self, text, tag=None):
        for line in text.strip().split('\n'):
            line = line.strip()
            if line and not line.startswith(';'):
                self.L.append(Ins(line, tag))
        return self

    def pseudo(self, what, arg=None):
        i = Ins('')
        i.kind = 'pseudo'
        i.meta = (what, arg)
        self.L.append(i)

    def wait_tag(self, tag):
        self.pseudo('wait_tag', tag)

    def wait_ds(self):
        self.pseudo('wait_ds')

    def drain(self):
        self.pseudo('drain')

    def push(self):
        self.pseudo('push')

    def pop(self):
        self.pseudo('pop')

    def reset(self):
        self.pseudo('reset')

    def extend(self, other):
        self.L += other.L
        return self


def interleave(main, side, slots, start=0, stop=None):
    out = Stream()
    S = list(side.L)
    si = 0
    M = main.L
    nm = 0
    i = 0
    while i < len(M):
        ins = M[i]
        out.L.append(ins)
        i += 1
        if ins.kind in ('mfma4', 'mfma8'):
            used = 0
            j = i
            while j < len(M) and M[j].kind not in ('mfma4', 'mfma8'):
                if M[j].kind not in ('pseudo', 'label', 'dir'):
                    used += M[j].cost
                j += 1
            out.L += M[i:j]
            i = j
            if nm >= start and (stop is None or nm < stop):
                while si < len(S):
                    c = S[si].cost if S[si].kind not in ('pseudo', 'label', 'dir') else 0
                    if used + c > slots:
                        break
                    out.L.append(S[si])
                    used += c
                    si += 1
            nm += 1
    out.L += S[si:]
    return out


def insert_waits(L):
    out = []
    vm, lg = [], []
    stack = []

    def emit_wait(v=None, l=None):
        parts = []
        if v is not None:
            parts.append(f'vmcnt({min(v, 63)})')
            del vm[:len(vm) - v]
        if l is not None:
            parts.append(f'lgkmcnt({min(l, 15)})')
            del lg[:len(lg) - l]
        out.append(Ins('s_waitcnt ' + ' '.join(parts)))

    for ins in L:
        if ins.kind == 'pseudo':
            what, arg = ins.meta
            if what == 'wait_tag':
                idx = [i for i, e in enumerate(vm) if e[1] == arg]
                if idx:
                    emit_wait(v=len(vm) - 1 - idx[-1])
            elif what == 'wait_ds':
                if lg:
                    emit_wait(l=0)
            elif what == 'drain':
                if vm or lg:
                    emit_wait(v=0 if vm else None, l=0 if lg else None)
            elif what == 'push':
                stack.append((list(vm), list(lg)))
            elif what == 'pop':
                ovm, olg = stack.pop()
                nv = [e for e in vm if not any(e is o for o in ovm)]
                nl = [e for e in lg if not any(e is o for o in olg)]
                wv = any(e[0] or e[1] for e in nv)
                wl = len(nl) > 0
                if wv or wl:
                    emit_wait(v=0 if wv else None, l=0 if wl else None)
                vm[:] = ovm
                lg[:] = olg
            elif what == 'reset':
                vm.clear()
                lg.clear()
            continue
        if ins.kind == 'wait':
            m = re.search(r'vmcnt\((\d+)\)', ins.text)
            if m:
                n = int(m.group(1))
                if n < len(vm):
                    del vm[:len(vm) - n]
            m = re.search(r'lgkmcnt\((\d+)\)', ins.text)
            if m:
                n = int(m.group(1))
                if n == 0 or not any(e[2] for e in lg):
                    if n < len(lg):
                        del lg[:len(lg) - n]
            out.append(ins)
            continue
        touch = set(ins.rd) | set(ins.wr)
        v = l = None
        for i in range(len(vm) - 1, -1, -1):
            if vm[i][0] & touch:
                v = len(vm) - 1 - i
                break
        for i in range(len(lg) - 1, -1, -1):
            if lg[i][0] & touch:
                l = 0 if any(e[2] for e in lg) else len(lg) - 1 - i
                break
        if v is not None or l is not None:
            emit_wait(v, l)
        out.append(ins)
        if ins.kind in ('vld', 'vst', 'dma'):
            vm.append((set(ins.wr), ins.tag, False))
        elif ins.kind in ('dsr', 'dsw'):
            lg.append((set(ins.wr), ins.tag, False))
        elif ins.kind == 'smem':
            lg.append((set(ins.wr), ins.tag, True))
    return out


def need_states(p, c):
    n = 0
    pw, pr = set(p.wr), set(p.rd)
    cr, cw = set(c.rd), set(c.wr)
    isv = lambda s: {r for r in s if r[0] in 'va' and r[1:].isdigit()}
    iss = lambda s: {r for r in s if (r[0] == 's' and r[1:].isdigit()) or r == 'vcc'}
    if p.kind in VALU_KINDS:
        vw = isv(pw)
        sw = iss(pw)
        if c.kind in ('mfma4', 'mfma8') and vw & cr:
            n = max(n, 2)
        if c.kind in ('dpp', 'perm') and vw & cr:
            n = max(n, 2)
        if c.kind == 'rdlane' and vw & cr:
            n = max(n, 1)
        if p.kind == 'trans' and c.kind in VALU_KINDS and vw & cr:
            n = max(n, 1)
        if p.kind == 'trans' and c.kind in ('vst', 'dsw', 'vld', 'dsr', 'dma') and vw & cr:
            n = max(n, 1)
        if p.op.startswith('v_dot') and vw & (cr | cw):
            same = c.op == p.op and not (vw & set(c.rd[:-1]))
            if not same:
                n = max(n, 3)
        if sw & cr:
            if c.kind in ('vld', 'vst', 'dma'):
                n = max(n, 5)
            elif c.kind in VALU_KINDS:
                n = max(n, 4 if c.op.startswith(('v_readlane', 'v_writelane')) else 2)
            elif c.kind in ('salu', 'branch', 'smem'):
                n = max(n, 1)
        if 'exec' in pw:
            if c.kind == 'dpp':
                n = max(n, 5)
            elif c.kind in ('perm', 'rdlane', 'mfma4', 'mfma8'):
                n = max(n, 4)
            elif c.kind == 'branch':
                n = max(n, 5)
        if ('sdwa' in p.text or 'op_sel' in p.text) and c.kind in VALU_KINDS and vw & (cr | cw):
            n = max(n, 1)
    if p.kind in ('mfma4', 'mfma8'):
        e = p.kind == 'mfma8'
        if c.kind in ('mfma4', 'mfma8'):
            cs = set(c.srcc)
            ab = cr - cs if not (cs <= cr and False) else cr
            abregs = set(c.rd[:len(c.rd) - len(c.srcc)])
            if pw & abregs:
                n = max(n, 12 if e else 8)
            if pw & cs:
                if not (tuple(p.wr) == tuple(c.srcc) and p.kind == c.kind):
                    n = max(n, 10 if e else 6)
            elif pw & cw:
                n = max(n, 12 if e else 8)
        else:
            if pw & (cr | cw):
                n = max(n, 12 if e else 8)
            if c.kind in VALU_KINDS and set(p.srcc) & cw:
                n = max(n, 7 if e else 3)
    if p.kind == 'vst' and ('x4' in p.op or 'x3' in p.op) and isv(pr) & cw:
        n = max(n, 2 if c.kind in VALU_KINDS else 1)
    if p.kind == 'salu' and 'm0' in pw and c.kind == 'dma':
        n = max(n, 1)
    return n


def insert_nops(L):
    out = []
    for ins in L:
        if ins.kind in ('label', 'dir'):
            out.append(ins)
            continue
        need = 0
        dist = 0
        for p in reversed(out):
            if p.kind in ('label', 'dir'):
                continue
            if dist >= 12:
                break
            r = need_states(p, ins) - dist
            if r > need:
                need = r
            dist += p.cost if p.kind == 'nop' else 1
        while need > 0:
            k = min(need, 8)
            out.append(Ins(f's_nop {k - 1}'))
            need -= k
        out.append(ins)
    return out


def finalize(stream):
    L = insert_waits(stream.L)
    L = insert_nops(L)
    return '\n'.join(('' if i.kind == 'label' else '  ') + i.text for i in L) + '\n', L
```

```python
from asmlib import Stream, interleave, finalize

KN = "interleave_layers__ssm_conv_h3__geglu_ffn__prompt_kernel"

CNT = 0
L_U, L_QZ, L_WD, L_W1, L_X1, L_H, L_X3, L_END = 0, 32, 64, 70, 80, 128, 256, 320
TS = 0x00080000
U_ = 0x00100000
QZ = 0x00400000
QS = 0x00700000
W1P = 0x00A00000
WDP = 0x00F00000
X1 = 0x01200000
YY = 0x01500000
X3 = 0x01800000
H1 = 0x01B00000
H2 = 0x02200000
ST1 = 0x02A00000
ST2 = 0x02A80000
ST3 = 0x02B00000
XSUB = 160 * 1024
HSUB = 448 * 1024
OOB = 0x80000000

P_Q, P_K, P_V, P_SH, P_H, P_D, P_BX, P_WG, P_WU, P_WD, P_OUT, P_DBG, P_WS = range(4, 30, 2)
sX, sR, sW, sB = 30, 31, 32, 33
sBOUND = 34
sT0 = 35
R_WS = 36
R_A, R_B, R_C, R_D, R_E = 40, 44, 48, 52, 56
sKS = 60
sS1, sR1 = 90, 91
sTMP = 80
R_DBG = 96

SPIN = 1 << 20
NT = 'nt'


def srd(S, r, p, size, add=None):
    if add is None:
        S(f"s_mov_b32 s{r}, s{p}\ns_mov_b32 s{r+1}, s{p+1}")
    else:
        S(f"s_add_u32 s{r}, s{p}, {add}\ns_addc_u32 s{r+1}, s{p+1}, 0")
    S(f"s_mov_b32 s{r+2}, {size:#x}\ns_mov_b32 s{r+3}, 0x00020000")


def R(r):
    return f"s[{r}:{r+3}]"


def v(a, n=1):
    return f"v{a}" if n == 1 else f"v[{a}:{a+n-1}]"


def a(i, n=1):
    return f"a{i}" if n == 1 else f"a[{i}:{i+n-1}]"


_uid = [0]


def lab(p):
    _uid[0] += 1
    return f"L_{p}_{_uid[0]}"


class Cfg:
    ts = False
    tsr = 150
    stop = None


TSN = {}


def stamp(S, name):
    if not Cfg.ts:
        return
    if name == "start":
        idx, op = 0, "s_memtime"
        S(f"v_mov_b32 v{Cfg.tsr}, -1")
        stamp(S, "rt0")
    elif name in ("rt0", "rt1"):
        idx, op = (63 if name == "rt0" else 62), "s_memrealtime"
    else:
        idx, op = TSN.setdefault(name, len(TSN) + 1), "s_memtime"
        assert idx < 62
    S(f"""{op} s[92:93]
    s_waitcnt lgkmcnt(0)
    v_writelane_b32 v{Cfg.tsr}, s92, {idx}""")


def ts_move(S, new):
    if Cfg.ts and new != Cfg.tsr:
        S(f"v_mov_b32 v{new}, v{Cfg.tsr}")
    Cfg.tsr = new


def ts_flush(S, vt):
    if not Cfg.ts:
        return
    stamp(S, "end")
    stamp(S, "rt1")
    S(f"""s_lshl_b32 s94, s2, 2
    s_add_u32 s94, s94, s{sW}
    s_lshl_b32 s94, s94, 8
    s_add_u32 s94, s94, {TS:#x}
    v_lshl_add_u32 v{vt}, v1, 2, s94
    buffer_store_dword v{Cfg.tsr}, v{vt}, {R(R_WS)}, 0 offen
    s_waitcnt vmcnt(0)""")


def poll(S, voff, vtgt, vtmp):
    l, d = lab("poll"), lab("pdone")
    S.drain()
    S(f"""s_mov_b32 s{sBOUND}, {SPIN}
    {l}:
    buffer_load_dword v{vtmp}, v{voff}, {R(R_WS)}, 0 offen sc1
    s_waitcnt vmcnt(0)
    v_cmp_gt_u32 vcc, v{vtgt}, v{vtmp}
    s_cbranch_vccz {d}
    s_sub_u32 s{sBOUND}, s{sBOUND}, 1
    s_cbranch_scc0 {l}
    s_branch L_end
    {d}:""")


def signal(S, sline_expr_sgpr, vt0, vt1):
    S.push()
    S(f"""v_mov_b32 v{vt0}, s{sline_expr_sgpr}
    v_mov_b32 v{vt1}, 1
    s_cmp_eq_u32 s{sW}, 0
    s_cselect_b32 exec_lo, 1, 0
    s_mov_b32 exec_hi, 0
    buffer_atomic_add v{vt1}, v{vt0}, {R(R_WS)}, 0 offen sc1
    s_mov_b64 exec, -1""")
    S.pop()
```

```python
from common import *
from prep import vTID, vL, vT0, vT1, ROLE, cvt_lo, cvt_hi

YST, CHS = 0, 2112
HB, HCH = 8448, 16640
UB, UCH, UCP = 75008, 12480, 6240

HX, HY, vD = ROLE, ROLE + 16, ROLE + 24
vAB, vBB = 2, 3
vYW0, vYW1, vTR = 4, 5, 6
vQA, vXA, vQS = 7, 10, 11
AD = 12
ACC = 16
UOF = 48
EP = 60
POOL = 124


def h_loads(S):
    S(f"""s_lshl_b32 s84, s2, 2
    s_add_u32 s84, s84, s{sW}
    s_lshl_b32 s82, s84, 12""")
    srd(S, R_E, P_H, 4096, add="s82")
    S(f"""v_lshlrev_b32 v{vD}, 4, v{vL}
    v_subrev_u32 v{vD+1}, 8, v{vD}""")
    for it in range(4):
        S(f"buffer_load_dwordx4 {v(HX+4*it,4)}, v{vD}, {R(R_E)}, 0 offen offset:{1024*it} {NT}")
    S(f"buffer_load_dwordx2 {v(HY,2)}, v{vD+1}, {R(R_E)}, 0 offen {NT}")
    S(f"v_add_u32 v{vD+1}, 1016, v{vD}")
    for it in range(1, 4):
        S(f"buffer_load_dwordx2 {v(HY+2*it,2)}, v{vD+1}, {R(R_E)}, 0 offen offset:{1024*(it-1)} {NT}")
    return 8


def d_load(S):
    srd(S, R_D, P_D, 1280)
    S(f"""s_lshl_b32 s82, s84, 1
    v_mov_b32 v{vD}, s82
    buffer_load_ushort v{vD}, v{vD}, {R(R_D)}, 0 offen""")
    return 1


def h_build(S):
    T = 164
    S(f"""s_mul_i32 s80, s{sW}, {HCH}
    s_add_u32 s80, s80, {HB}
    v_lshl_add_u32 v{vT0}, v{vL}, 4, s80""")
    for i in range(4):
        S(f"v_mov_b32 v{T+i}, 0")
    S(f"""v_and_b32 v{vT1}, 3, v{vL}
    v_bfe_u32 v{T+4}, v{vL}, 2, 2
    v_mul_u32_u24 v{T+4}, 260, v{T+4}
    v_add_u32 v{vT1}, v{vT1}, v{T+4}
    v_lshl_add_u32 v{vT1}, v{vT1}, 4, s80
    ds_write_b128 v{vT1}, {v(T,4)}
    s_mul_i32 s81, s{sW}, {UCH}
    s_add_u32 s81, s81, {UB + 320*16}
    v_lshl_add_u32 v{vT1}, v{vL}, 4, s81""")
    for cp in range(2):
        for o in (0, 6 * 16):
            S(f"ds_write_b128 v{vT1}, {v(T,4)} offset:{cp*UCP + o}")
    for it in range(4):
        X, Y = HX + 4 * it, HY + 2 * it
        c0, c1, c2 = T + 8 + 12 * (it & 1), T + 12 + 12 * (it & 1), T + 16 + 12 * (it & 1)
        d = [Y, Y + 1, X, X + 1, X + 2, X + 3]
        for i in range(4):
            S(f"v_alignbit_b32 v{c0+i}, v{d[i+1]}, v{d[i]}, 16")
        for i in range(4):
            S(f"v_mov_b32 v{c1+i}, v{d[i+1]}")
        for i in range(4):
            S(f"v_alignbit_b32 v{c2+i}, v{d[i+2]}, v{d[i+1]}, 16")
        for sg, r_ in enumerate((c0, c1, c2, X)):
            S(f"ds_write_b128 v{vT0}, {v(r_,4)} offset:{48 + sg*4160 + 1024*it}")
    S(f"""v_and_b32 v{T}, 3, v{vL}
    v_bfe_u32 v{T+1}, v{vL}, 2, 2
    v_lshrrev_b32 v{T+2}, 4, v{vL}
    v_add_u32 v{T+3}, v{T+1}, v{T+2}
    v_mul_u32_u24 v{vAB}, 260, v{T}
    v_add_u32 v{vAB}, v{vAB}, v{T+3}
    v_lshl_add_u32 v{vAB}, v{vAB}, 4, s80""")
    S(f"""v_lshlrev_b32 v{T+4}, 16, v{vD}
    v_and_b32 v{T+5}, 1, v{T}
    v_cmp_eq_u32 vcc, 0, v{T+5}
    v_cndmask_b32 v{T+4}, v{vD}, v{T+4}, vcc
    v_cmp_eq_u32 vcc, 3, v{T+3}
    v_cndmask_b32 v{T+4}, 0, v{T+4}, vcc
    v_cmp_gt_u32 vcc, 2, v{T}
    v_cndmask_b32 v{AD}, v{T+4}, 0, vcc
    v_cndmask_b32 v{AD+1}, 0, v{T+4}, vcc
    v_mov_b32 v{AD+2}, 0
    v_mov_b32 v{AD+3}, 0""")
    S(f"""v_and_b32 v{T}, 15, v{vL}
    v_subrev_u32 v{T+1}, 4, v{T}
    v_cmp_gt_u32 vcc, 8, v{T+1}
    v_and_b32 v{T+3}, 7, v{T}
    v_cndmask_b32 v{T+1}, v{T+3}, v{T+1}, vcc
    v_cndmask_b32 v{T+3}, 0, 1, vcc""")
    S(f"""s_mul_i32 s81, s{sW}, {UCH}
    s_add_u32 s81, s81, {UB + 16*70}
    v_mul_u32_u24 v{T+4}, 10, v{T+1}
    v_sub_u32 v{T+4}, v{T+2}, v{T+4}
    v_lshlrev_b32 v{T+4}, 4, v{T+4}
    v_add_u32 v{T+4}, s81, v{T+4}
    v_mov_b32 v{T+5}, {UCP}
    v_cndmask_b32 v{T+5}, v{T+5}, 0, vcc
    v_add_u32 v{vBB}, v{T+4}, v{T+5}""")
    S(f"""v_lshrrev_b32 v{T+4}, 1, v{T+1}
    v_and_b32 v{T+5}, 1, v{T+1}
    v_lshlrev_b32 v{T+4}, 8, v{T+4}
    v_lshl_add_u32 v{T+4}, v{T+5}, 6, v{T+4}
    v_lshl_add_u32 v{T+4}, v{T+2}, 3, v{T+4}
    v_lshl_add_u32 v{T+4}, v{T+3}, 2, v{T+4}
    s_mul_i32 s81, s{sW}, {CHS}
    s_add_u32 s81, s81, {YST}
    v_add_u32 v{vYW0}, s81, v{T+4}
    v_add_u32 v{vYW1}, 1024, v{vYW0}""")
    S(f"""v_bfe_u32 v{T+4}, v{vL}, 2, 2
    v_mul_u32_u24 v{T+4}, {CHS}, v{T+4}
    v_lshl_add_u32 v{T+4}, v{T+2}, 5, v{T+4}
    v_and_b32 v{T+5}, 3, v{vL}
    v_lshl_add_u32 v{T+4}, v{T+5}, 3, v{T+4}
    s_lshl_b32 s81, s{sW}, 8
    s_add_u32 s81, s81, {YST}
    v_add_u32 v{vTR}, s81, v{T+4}""")
    S(f"""v_lshrrev_b32 v{T+4}, 3, v{vL}
    v_and_b32 v{T+5}, 7, v{vL}
    v_mul_u32_u24 v{T+4}, 20480, v{T+4}
    v_lshl_add_u32 v{T+4}, v{T+5}, 4, v{T+4}
    s_mul_i32 s81, s{sW}, {8*20480}
    s_lshl_b32 s83, s2, 7
    s_add_u32 s81, s81, s83
    s_add_u32 s81, s81, {QZ:#x}
    v_add_u32 v{vQA}, s81, v{T+4}
    s_lshl_b32 s81, s{sW}, 10
    s_add_u32 s81, s81, {QS:#x}
    v_lshl_add_u32 v{vQS}, v{vL}, 4, s81
    s_mul_i32 s81, s{sW}, {2*XSUB}
    s_lshl_b32 s83, s2, 10
    s_add_u32 s81, s81, s83
    s_add_u32 s81, s81, {X1:#x}
    v_lshl_add_u32 v{vXA}, v{vL}, 4, s81""")
    for it in range(5):
        S(f"""v_add_u32 v{T+4}, {64*it}, v{vL}
        v_mul_u32_u24 v{T+5}, 205, v{T+4}
        v_lshrrev_b32 v{T+5}, 11, v{T+5}
        v_mul_u32_u24 v{T+6}, 10, v{T+5}
        v_sub_u32 v{T+6}, v{T+4}, v{T+6}
        v_lshl_add_u32 v{T+5}, v{T+5}, 3, v{T+6}
        v_lshlrev_b32 v{T+5}, 4, v{T+5}
        v_cmp_gt_u32 vcc, 8, v{T+6}
        v_mov_b32 v{T+6}, {OOB:#x}
        v_cndmask_b32 v{UOF+2*it}, v{T+6}, v{T+5}, vcc
        v_add_u32 v{UOF+2*it+1}, 8, v{UOF+2*it}""")
    S(f"""s_lshl_b32 s81, s84, 12
    s_add_u32 s81, s81, {U_:#x}""")
    srd(S, R_A, P_WS, 4096, add="s81")


def wave0_poll(S, first_line_sgpr, nlines, tgt_setup, vt):
    d = lab("w0p")
    S.drain()
    S(f"""s_cmp_lg_u32 s{sW}, 0
    s_cbranch_scc1 {d}
    v_lshl_add_u32 v{vt}, v{vL}, 7, s{first_line_sgpr}
    v_cmp_gt_u32 vcc, {nlines}, v{vL}
    v_mov_b32 v{vt+1}, {OOB:#x}
    v_cndmask_b32 v{vt}, v{vt+1}, v{vt}, vcc""")
    S(tgt_setup)
    S(f"v_cndmask_b32 v{vt+1}, 0, v{vt+1}, vcc")
    poll(S, vt, vt + 1, vt + 2)
    S(f"{d}:\ns_barrier")


def u_dma(S):
    for it in (2, 3, 4, 1, 0):
        for cp in range(2):
            S(f"""s_mul_i32 s80, s{sW}, {UCH}
            s_add_u32 m0, s80, {UB + cp*UCP + it*1024}
            buffer_load_dwordx4 v{UOF+2*it+cp}, {R(R_A)}, 0 offen sc1 lds""", tag=f"U{min(it,2)}")


def mfma_seq(p):
    seq = []
    c_hi, c_lo = 2 * p + 1, 2 * p
    for m in range(16 * c_hi + 16):
        extra = []
        for c in (c_hi, c_lo):
            if m > 16 * c + 15:
                continue
            nu = 16 * c - m + 15
            for rho in (1, 0):
                mu = m + rho
                if mu >= 1:
                    seq.append((2 * c + rho, ('A', mu), ('B', nu)))
                if mu == 1:
                    extra.append((2 * c + rho, ('D', 0), ('B', nu)))
        seq += extra
    return seq


def frag_read(f, reg):
    k, i = f
    if k == 'A':
        return f"ds_read_b128 {v(reg,4)}, v{vAB} offset:{64*(i-1)}"
    return f"ds_read_b128 {v(reg,4)}, v{vBB} offset:{16*(10*(31-(i>>1)) + 4*(1-(i&1)))}"


class FragSched:
    def __init__(self, nslots, look):
        self.seq = mfma_seq(0) + mfma_seq(1)
        self.n0 = len(mfma_seq(0))
        self.nslots, self.look = nslots, look
        self.res = {}
        self.free = list(range(nslots))
        self.first = set()

    def next_use(self, f, i):
        for j in range(i, len(self.seq)):
            if f in self.seq[j][1:]:
                return j
        return 1 << 30

    def fetch(self, S, i, maxn, limit):
        n = 0
        j = i
        while n < maxn and j < min(limit, len(self.seq)):
            for f in self.seq[j][1:]:
                if f[0] == 'D' or f in self.res or n >= maxn:
                    continue
                if self.free:
                    sl = self.free.pop(0)
                else:
                    vic = max(self.res, key=lambda g: self.next_use(g, i))
                    if self.next_use(vic, i) <= j:
                        return n
                    sl = self.res.pop(vic)
                self.res[f] = sl
                S(frag_read(f, POOL + 4 * sl))
                n += 1
            j += 1
        return n

    def emit(self, S, lo, hi, fence=None):
        fence = fence or len(self.seq)
        for i in range(lo, hi):
            if i == 0:
                self.fetch(S, i, 8, min(fence, i + self.look))
            acc, fa, fb = self.seq[i]
            for f in (fa, fb):
                if f[0] != 'D' and f not in self.res:
                    self.fetch(S, i, 2, i + 1)
            ra = AD if fa[0] == 'D' else POOL + 4 * self.res[fa]
            rb = POOL + 4 * self.res[fb]
            d = v(ACC + 4 * acc, 4)
            c = d if acc in self.first else "0"
            self.first.add(acc)
            S(f"v_mfma_f32_16x16x32_bf16 {d}, {v(ra,4)}, {v(rb,4)}, {c}")
            self.fetch(S, i + 1, 1, min(fence, i + 1 + self.look))


def qz_loads(S, p):
    for a_ in range(2):
        S(f"s_mov_b32 s80, {1310720 * p + 655360 * a_}")
        S(f"buffer_load_dwordx4 {v(EP+8*a_,4)}, v{vQA}, {R(R_WS)}, s80 offen sc1")
        S(f"s_mov_b32 s80, {8192 * p + 4096 * a_}")
        S(f"buffer_load_dwordx4 {v(EP+8*a_+4,4)}, v{vQS}, {R(R_WS)}, s80 offen sc1")


def y_stage(S, p):
    T = EP + 16
    for cl in range(2):
        for rho in range(2):
            A = ACC + 4 * (2 * (2 * p + cl) + rho)
            t = T + 2 * (2 * cl + rho)
            S(f"""v_cvt_pk_bf16_f32 v{t}, v{A}, v{A+2}
            v_cvt_pk_bf16_f32 v{t+1}, v{A+1}, v{A+3}
            ds_write2_b32 v{vYW1 if cl else vYW0}, v{t}, v{t+1} offset0:{8*rho} offset1:{8*rho+32}""")


def x1_out(S, p):
    Y = EP + 24
    F = EP + 32
    O = EP + 56
    for a_ in range(2):
        for par in range(2):
            S(f"ds_read_b64_tr_b16 {v(Y+4*a_+2*par,2)}, v{vTR} offset:{1024*a_ + 128*par}")
    for a_ in range(2):
        so = 4 * a_ * 2 * XSUB + p * XSUB
        S(f"s_mov_b32 s80, {so + YY - X1}")
        S(f"buffer_store_dwordx4 {v(Y+4*a_,4)}, v{vXA}, {R(R_WS)}, s80 offen sc1", tag="X1")
        for par in range(2):
            q = EP + 8 * a_ + 2 * par
            st = EP + 8 * a_ + 4 + 2 * par
            for h in range(2):
                f = F + 6 * (2 * par + h)
                cvt_lo(S, f, q + h)
                cvt_hi(S, f + 1, q + h)
                cvt_lo(S, f + 4, Y + 4 * a_ + 2 * par + h)
                cvt_hi(S, f + 5, Y + 4 * a_ + 2 * par + h)
                for u in range(2):
                    S(f"v_fma_f32 v{f+2+u}, v{f+u}, v{st}, v{st+1}")
                for u in range(2):
                    S(f"v_fmac_f32 v{f+u}, v{f+2+u}, v{f+4+u}")
                S(f"v_cvt_pk_bf16_f32 v{O+4*a_+2*par+h}, v{f}, v{f+1}")
        S(f"s_mov_b32 s81, {so}")
        S(f"buffer_store_dwordx4 {v(O+4*a_,4)}, v{vXA}, {R(R_WS)}, s81 offen sc1", tag="X1")


def x1_line(S, p, sd):
    S(f"""s_lshl_b32 s{sd}, s{sX}, 1
    s_and_b32 s{sd+1}, s{sR}, 1
    s_add_u32 s{sd}, s{sd}, s{sd+1}
    s_lshl_b32 s{sd}, s{sd}, 7
    s_add_u32 s{sd}, s{sd}, {CNT + (L_X1 + 16*p)*128}""")
```

```python
from common import *

vTID, vL = 0, 1
vKB, vKA, vSO, vLW, vUO, vLR = 2, 3, 4, 5, 6, 7
vT0, vT1 = 8, 9
KR, VR, SR, QR = 10, 32, 48, 56
vRDY = 66
ROLE = 68
KF, SF, UF = 164, 208, 224
QF = 164
LDS_QST = 0


def prologue(S):
    S(f"""s_cmp_ge_u32 s2, 256
    s_cbranch_scc1 L_end
    s_load_dwordx16 s[4:19], s[0:1], 0
    s_load_dwordx8 s[20:27], s[0:1], 64
    s_load_dwordx2 s[28:29], s[0:1], 96
    v_lshrrev_b32 v{vT0}, 6, v0
    v_and_b32 v{vL}, 63, v0
    s_and_b32 s{sX}, s2, 7
    s_lshr_b32 s{sR}, s2, 3
    v_readfirstlane_b32 s{sW}, v{vT0}
    s_lshr_b32 s{sS1}, s{sX}, 2
    s_lshl_b32 s{sS1}, s{sS1}, 2
    s_lshr_b32 s80, s{sR}, 3
    s_add_u32 s{sS1}, s{sS1}, s80
    s_and_b32 s{sR1}, s{sX}, 3
    s_lshl_b32 s{sR1}, s{sR1}, 3
    s_and_b32 s80, s{sR}, 7
    s_add_u32 s{sR1}, s{sR1}, s80""")
    for i in range(20):
        S(f"s_mov_b32 s{sKS+i}, {i*8192}")
    S(f"""s_movk_i32 s{sT0}, 5120
    s_waitcnt lgkmcnt(0)""")
    srd(S, R_WS, P_WS, 0x10000000)
    srd(S, R_DBG, P_DBG, 256)


def kv_addr(S, lds_stage, lds_stride):
    srd(S, R_A, P_K, 2048 * 1280)
    srd(S, R_B, P_V, 2048 * 1280)
    srd(S, R_C, P_SH, 640 * 8)
    S(f"""s_lshr_b32 s80, s2, 5
    s_and_b32 s81, s2, 31
    s_lshl_b32 s80, s80, 8
    s_lshl_b32 s82, s{sW}, 6
    s_add_u32 s80, s80, s82
    s_mul_i32 s82, s81, {64*1280}
    s_add_u32 s82, s82, s80
    v_lshrrev_b32 v{vT0}, 3, v{vL}
    v_and_b32 v{vT1}, 7, v{vL}
    v_mul_u32_u24 v{vKB}, {8*1280}, v{vT0}
    v_lshl_add_u32 v{vKB}, v{vT1}, 3, v{vKB}
    v_add_u32 v{vKB}, s82, v{vKB}
    v_subrev_u32 v{vKA}, 3840, v{vKB}
    s_lshl_b32 s82, s80, 2
    v_lshl_add_u32 v{vSO}, v{vT1}, 5, s82""")
    return lambda S: S(f"""s_lshl_b32 s80, s80, 11
    s_lshl_b32 s81, s81, 7
    s_sub_u32 s80, s80, s81
    s_add_u32 s80, s80, {U_ + 3968:#x}
    v_lshlrev_b32 v{vUO}, 14, v{vT0}
    v_lshl_add_u32 v{vUO}, v{vT1}, 4, v{vUO}
    v_add_u32 v{vUO}, s80, v{vUO}
    s_mul_i32 s80, s{sW}, {lds_stride}
    s_add_u32 s80, s80, {lds_stage}
    v_xor_b32 v{vLR}, v{vT0}, v{vT1}
    v_xor_b32 v{vLW}, 7, v{vLR}
    v_lshlrev_b32 v{vLR}, 4, v{vLR}
    v_lshlrev_b32 v{vLW}, 4, v{vLW}
    v_lshl_add_u32 v{vLR}, v{vT0}, 7, v{vLR}
    v_lshl_add_u32 v{vLW}, v{vT1}, 7, v{vLW}
    v_add_u32 v{vLR}, s80, v{vLR}
    v_add_u32 v{vLW}, s80, v{vLW}""")


def zero_flags(S):
    z = KF
    S("\n".join(f"v_mov_b32 v{z+i}, 0" for i in range(4)))
    l = lab("nz")
    S.push()
    S(f"""s_cmp_lg_u32 s2, 0
    s_cbranch_scc1 {l}
    v_lshlrev_b32 v{vT0}, 7, v0
    buffer_store_dword v{z}, v{vT0}, {R(R_WS)}, 0 offen sc1
    v_add_u32 v{vT1}, {256*128}, v{vT0}
    v_cmp_gt_u32 vcc, {L_END-256}, v0
    v_mov_b32 v{vT0}, {OOB:#x}
    v_cndmask_b32 v{vT1}, v{vT0}, v{vT1}, vcc
    buffer_store_dword v{z}, v{vT1}, {R(R_WS)}, 0 offen sc1
    {l}:""")
    S.pop()
    S(f"""s_lshl_b32 s80, s{sS1}, 12
    s_lshr_b32 s81, s{sW}, 1
    s_lshl_b32 s82, s81, 10
    s_add_u32 s80, s80, s82
    s_lshl_b32 s82, s{sR1}, 5
    s_add_u32 s80, s80, s82
    s_and_b32 s83, s{sW}, 1
    s_lshl_b32 s82, s83, 4
    s_add_u32 s80, s80, s82
    s_add_u32 s80, s80, {ST1:#x}
    v_lshl_add_u32 v{vT0}, v{vL}, 11, s80
    s_lshl_b32 s80, s{sX}, 14
    s_lshl_b32 s82, s81, 13
    s_add_u32 s80, s80, s82
    s_lshl_b32 s82, s{sR}, 8
    s_add_u32 s80, s80, s82
    s_lshl_b32 s82, s83, 7
    s_add_u32 s80, s80, s82
    s_add_u32 s80, s80, {ST2 - 128:#x}
    v_lshl_add_u32 v{vT1}, v{vL}, 4, s80
    v_cmp_gt_u32 vcc, 2, v{vL}
    v_cndmask_b32 v{vT1}, v{vT1}, v{vT0}, vcc
    v_subrev_u32 v{z+4}, 2, v{vL}
    v_cmp_gt_u32 vcc, 6, v{z+4}
    v_mov_b32 v{vT0}, {OOB:#x}
    v_cndmask_b32 v{vT1}, v{vT1}, v{vT0}, vcc
    v_cmp_lt_u32 vcc, 15, v{vL}
    v_cndmask_b32 v{vT1}, v{vT1}, v{vT0}, vcc
    buffer_store_dwordx4 {v(z,4)}, v{vT1}, {R(R_WS)}, 0 offen sc1""")


def kv_loads(S):
    S(f"buffer_load_dwordx4 {v(SR,4)}, v{vSO}, {R(R_C)}, 0 offen")
    S(f"buffer_load_dwordx4 {v(SR+4,4)}, v{vSO}, {R(R_C)}, 0 offen offset:16")
    for i in range(11):
        if i < 3:
            S(f"buffer_load_dwordx2 {v(KR+2*i,2)}, v{vKA}, {R(R_A)}, 0 offen offset:{1280*i} {NT}")
        else:
            j = i - 3
            so = "0" if j < 4 else f"s{sT0}"
            S(f"buffer_load_dwordx2 {v(KR+2*i,2)}, v{vKB}, {R(R_A)}, {so} offen offset:{1280*(j&3)} {NT}")
            S(f"buffer_load_dwordx2 {v(VR+2*j,2)}, v{vKB}, {R(R_B)}, {so} offen offset:{1280*(j&3)} {NT}")
    return 21


def ready_load(S, vRDY=vRDY):
    S(f"v_mov_b32 v{vRDY}, 0")
    S(f"buffer_load_dword v{vRDY}, v{vRDY}, {R(R_DBG)}, 0 offen sc1")


def ready_flag(S, nloads):
    l = lab("nr")
    S.push()
    S(f"""s_cmp_lg_u32 s2, 0
    s_cbranch_scc1 {l}
    s_waitcnt vmcnt({nloads})
    s_barrier
    v_mov_b32 v{vT0}, 0
    v_mov_b32 v{vT1}, 1
    s_cmp_eq_u32 s{sW}, 0
    s_cselect_b32 exec_lo, 1, 0
    s_mov_b32 exec_hi, 0
    buffer_store_dword v{vT1}, v{vT0}, {R(R_DBG)}, 0 offen sc1
    s_mov_b64 exec, -1
    {l}:""")
    S.pop()


def ready_wait(S, t):
    l, d = lab("rw"), lab("rwd")
    S.drain()
    S(f"""s_cmp_lg_u32 s{sW}, 0
    s_cbranch_scc1 {d}
    s_mov_b32 s{sBOUND}, {SPIN}
    {l}:
    v_mov_b32 v{t}, 0
    buffer_load_dword v{t}, v{t}, {R(R_DBG)}, 0 offen sc1
    s_waitcnt vmcnt(0)
    v_readfirstlane_b32 s80, v{t}
    s_cmp_lg_u32 s80, 0
    s_cbranch_scc1 {d}
    s_sub_u32 s{sBOUND}, s{sBOUND}, 1
    s_cbranch_scc0 {l}
    s_branch L_end
    {d}:
    s_barrier""")


def cvt_lo(S, d, s):
    S(f"v_lshlrev_b32 v{d}, 16, v{s}")


def cvt_hi(S, d, s):
    S(f"v_and_b32 v{d}, 0xffff0000, v{s}")


def kv_compute(S, mid=None):
    for c in range(4):
        for j in range(4):
            (cvt_hi if j & 1 else cvt_lo)(S, SF + 4 * j + c, SR + 2 * c + (j >> 1))

    def cvk(i):
        for c in range(4):
            (cvt_hi if c & 1 else cvt_lo)(S, KF + 4 * i + c, KR + 2 * i + (c >> 1))
    for i in range(3):
        cvk(i)
    for tt in range(8):
        cvk(tt + 3)
        u = UF + 4 * tt
        for h in (0, 2):
            S(f"v_pk_mul_f32 {v(u+h,2)}, {v(KF+4*tt+h,2)}, {v(SF+12+h,2)}")
        for j in (2, 1, 0):
            for h in (0, 2):
                S(f"v_pk_fma_f32 {v(u+h,2)}, {v(KF+4*(tt+3-j)+h,2)}, {v(SF+4*j+h,2)}, {v(u+h,2)}")
        for c in range(4):
            (cvt_hi if c & 1 else cvt_lo)(S, KF + 4 * tt + c, VR + 2 * tt + (c >> 1))
        if mid:
            mid(S, tt)
        for h in (0, 2):
            S(f"v_pk_mul_f32 {v(u+h,2)}, {v(u+h,2)}, {v(KF+4*tt+h,2)}")
    for c in range(4):
        o = KR + 2 + 4 * c
        for e in range(4):
            S(f"v_cvt_pk_bf16_f32 v{o+e}, v{UF+4*(7-2*e)+c}, v{UF+4*(6-2*e)+c}")
        S(f"ds_write_b128 v{vLW}, {v(o,4)} offset:{1024*c}")
    ready_load(S)
    for c in range(4):
        S(f"ds_read_b128 {v(VR+4*c,4)}, v{vLR} offset:{1024*c}")
    for c in range(4):
        S(f"buffer_store_dwordx4 {v(VR+4*c,4)}, v{vUO}, {R(R_WS)}, 0 offen sc1", tag="U")
        if c < 3:
            S(f"v_add_u32 v{vUO}, 4096, v{vUO}")


def arrive_first(S, line_code, vt, vRDY=vRDY):
    l, d = lab("rdy"), lab("rdyd")
    S.push()
    S(f"""s_cmp_lg_u32 s{sW}, 0
    s_cbranch_scc1 {d}
    s_mov_b32 s{sBOUND}, {SPIN}
    {l}:
    v_readfirstlane_b32 s80, v{vRDY}
    s_cmp_lg_u32 s80, 0
    s_cbranch_scc1 {l}_ok
    v_mov_b32 v{vRDY}, 0
    buffer_load_dword v{vRDY}, v{vRDY}, {R(R_DBG)}, 0 offen sc1
    s_waitcnt vmcnt(0)
    s_sub_u32 s{sBOUND}, s{sBOUND}, 1
    s_cbranch_scc0 {l}
    s_branch L_end
    {l}_ok:""")
    S(line_code)
    S(f"""v_mov_b32 v{vt}, s80
    v_mov_b32 v{vt+1}, 1
    s_mov_b64 exec, 1
    buffer_atomic_add v{vt+1}, v{vt}, {R(R_WS)}, 0 offen sc1
    s_mov_b64 exec, -1
    {d}:""")
    S.pop()


def f2h(x):
    import struct
    return hex(struct.unpack("<I", struct.pack("<f", x))[0])


QR0 = 16
sP = 84


def q_dma(S):
    srd(S, R_D, P_Q, 2048 * 1280)
    t = 2
    S(f"""s_lshl_b32 s80, s{sP}, 2
    s_add_u32 s80, s80, s{sW}
    s_mul_i32 s81, s80, 20480
    v_lshrrev_b32 v{vT0}, 3, v{vL}
    v_and_b32 v{vT1}, 7, v{vL}
    v_and_b32 v{t+1}, 6, v{vT0}
    v_xor_b32 v{t+1}, v{t+1}, v{vT1}
    v_mul_u32_u24 v{t}, 2560, v{vT0}
    v_lshl_add_u32 v{t}, v{t+1}, 4, v{t}
    v_add_u32 v{t}, s81, v{t}
    s_mul_i32 s82, s{sW}, 20480
    s_add_u32 s82, s82, 1024""")
    for blk in range(10):
        for par in range(2):
            S(f"""s_add_i32 m0, s82, {blk*2048 + par*1024 - (par*1280 + blk*128)}
            buffer_load_dwordx4 v{t}, {R(R_D)}, 0 offen offset:{par*1280 + blk*128} {NT} lds""", tag="QL")
    S(f"""v_lshrrev_b32 v3, 1, v{vT0}
    v_and_b32 v4, 6, v{vT1}
    v_xor_b32 v3, v3, v4
    v_lshlrev_b32 v3, 4, v3
    v_lshl_add_u32 v3, v{vT1}, 7, v3
    v_and_b32 v4, 1, v{vT0}
    v_lshl_add_u32 v3, v4, 3, v3
    v_add_u32 v3, s82, v3
    v_xor_b32 v4, 64, v3
    s_cmp_lt_u32 s{sP}, 32
    s_cselect_b32 s83, 0, {OOB:#x}
    s_add_u32 s81, s81, {QZ:#x}
    s_or_b32 s81, s81, s83
    v_lshl_add_u32 v5, v{vL}, 4, s81
    v_add_u32 v7, 4096, v5
    s_lshl_b32 s80, s80, 7
    s_add_u32 s80, s80, {QS:#x}
    s_or_b32 s80, s80, s83
    v_lshl_add_u32 v6, v{vL}, 4, s80
    v_cmp_gt_u32 vcc, 8, v{vL}
    v_mov_b32 v{vT0}, {OOB:#x}
    v_cndmask_b32 v6, v{vT0}, v6, vcc""")


def q_task(S):
    A = 8
    S.wait_tag("QL")
    stamp(S, "qin")
    for it in range(20):
        blk, h = it >> 1, it & 1
        S(f"ds_read2st64_b64 {v(QR0+4*it,4)}, v{3+h} offset0:{4*blk} offset1:{4*blk+2}")
    S("s_mov_b32 s81, 0x3f803f80")
    for it in range(20):
        so = f"s{sKS + (it>>3)}"
        S(f"buffer_store_dwordx4 {v(QR0+4*it,4)}, v{7 if it & 4 else 5}, {R(R_WS)}, {so} offen offset:{1024*(it&3)} sc1", tag="QZ")
        for h in range(2):
            for e in range(2):
                r_ = QR0 + 4 * it + 2 * e + h
                first = it == 0 and h == 0
                S(f"v_dot2_f32_bf16 v{A+2*e}, v{r_}, s81, {'0' if first else 'v%d' % (A+2*e)}")
                S(f"v_dot2_f32_bf16 v{A+2*e+1}, v{r_}, v{r_}, {'0' if first else 'v%d' % (A+2*e+1)}")
    for i in range(4):
        S(f"v_add_f32_dpp v{A+i}, v{A+i}, v{A+i} row_ror:8 row_mask:0xf bank_mask:0xf")
    for op in ("v_permlane16_swap_b32", "v_permlane32_swap_b32"):
        for i in range(4):
            S(f"v_mov_b32 v{A+4+i}, v{A+i}")
        for i in range(4):
            S(f"{op} v{A+i}, v{A+4+i}")
        for i in range(4):
            S(f"v_add_f32 v{A+i}, v{A+i}, v{A+4+i}")
    for e in (0, 2):
        S(f"""v_mul_f32 v{A+4+e}, {f2h(1/640)}, v{A+e}
        v_mul_f32 v{A+e+1}, {f2h(1/640)}, v{A+e+1}
        v_fma_f32 v{A+e+1}, -v{A+4+e}, v{A+4+e}, v{A+e+1}
        v_max_f32 v{A+e+1}, 0, v{A+e+1}
        v_add_f32 v{A+e+1}, {f2h(1e-5)}, v{A+e+1}
        v_rsq_f32 v{A+e}, v{A+e+1}
        v_mul_f32 v{A+e+1}, -v{A+4+e}, v{A+e}""")
    S(f"buffer_store_dwordx4 {v(A,4)}, v6, {R(R_WS)}, 0 offen sc1", tag="QZ")


WR0 = 16
LDS_WD = 81920


def w_dma(S):
    S(f"""s_and_b32 s85, s{sP}, 1
    s_lshr_b32 s86, s{sP}, 1
    s_cmp_eq_u32 s85, 0
    s_cselect_b32 s{R_A}, s{P_WG}, s{P_WU}
    s_cselect_b32 s{R_A+1}, s{P_WG+1}, s{P_WU+1}
    s_mov_b32 s{R_A+2}, {640*3456}
    s_mov_b32 s{R_A+3}, 0x00020000
    s_mul_i32 s80, s{sW}, {160*3456}
    s_lshl_b32 s81, s86, 7
    s_add_u32 s80, s80, s81
    v_lshrrev_b32 v{vT0}, 3, v{vL}
    v_and_b32 v{vT1}, 7, v{vL}
    v_and_b32 v3, 2, v{vT0}
    v_xor_b32 v3, v3, v{vT1}
    v_mul_u32_u24 v2, 3456, v{vT0}
    v_add_u32 v2, s80, v2
    v_xor_b32 v4, 4, v3
    v_lshl_add_u32 v4, v4, 4, v2
    v_lshl_add_u32 v2, v3, 4, v2
    s_mul_i32 s82, s{sW}, 20480""")
    for i in range(20):
        S(f"""s_add_u32 m0, s82, {i*1024}
        s_mov_b32 s80, {i*8*3456}
        buffer_load_dwordx4 v{4 if i & 1 else 2}, {R(R_A)}, s80 offen {NT} lds""", tag="W1R")
    srd(S, R_B, P_WD, 1728 * 1280)
    S(f"""s_lshl_b32 s87, s{sP}, 2
    s_add_u32 s87, s87, s{sW}
    s_mul_i32 s80, s87, 9363
    s_lshr_b32 s80, s80, 16
    s_mul_i32 s80, s80, 7
    s_sub_u32 s80, s87, s80
    s_and_b32 s81, s87, 1
    s_cmp_lt_u32 s87, 168
    s_cselect_b32 s80, s80, s81
    s_and_b32 s81, s80, 1
    s_lshl_b32 s81, s81, 2
    s_lshl_b32 s83, s87, 3
    s_sub_u32 s83, s83, s81
    s_mul_i32 s83, s83, 1280
    s_cmp_eq_u32 s80, 6
    s_cselect_b64 vcc, -1, 0
    v_and_b32 v2, 1, v{vT0}
    v_bfe_u32 v3, v{vT0}, 1, 1
    v_lshl_add_u32 v2, v3, 3, v2
    v_lshrrev_b32 v4, 2, v{vT0}
    v_lshl_add_u32 v2, v4, 1, v2
    v_cndmask_b32 v2, v2, v{vT0}, vcc
    v_mul_u32_u24 v2, 1280, v2
    v_lshlrev_b32 v3, 2, v3
    v_xor_b32 v3, v3, v{vT1}
    v_lshl_add_u32 v2, v3, 4, v2
    v_add_u32 v2, s83, v2
    s_mul_i32 s82, s{sW}, 10240""")
    for i in range(10):
        S(f"""s_add_u32 m0, s82, {LDS_WD + i*1024 - 128*i}
        buffer_load_dwordx4 v2, {R(R_B)}, 0 offen offset:{128*i} {NT} lds""", tag="WDR")
    G, r_, part = 10, 11, 12
    S(f"""v_lshrrev_b32 v{G}, 4, v{vL}
    v_bfe_u32 v{r_}, v{vL}, 2, 2
    v_bfe_u32 v{part}, v{vL}, 1, 1
    v_and_b32 v13, 1, v{vL}
    v_lshlrev_b32 v13, 3, v13
    s_lshl_b32 s80, s{sW}, 1
    v_add_u32 v2, s80, v{part}
    v_and_b32 v3, 1, v{G}
    v_lshlrev_b32 v3, 2, v3
    v_and_b32 v4, 2, v{r_}
    v_xor_b32 v2, v2, v3
    v_xor_b32 v2, v2, v4
    v_lshl_add_u32 v2, v2, 4, v13
    v_lshl_add_u32 v3, v{G}, 3, v{r_}
    v_lshl_add_u32 v2, v3, 7, v2
    v_add_u32 v3, 65536, v2
    v_lshl_add_u32 v5, v{G}, 1, v{part}
    v_lshlrev_b32 v4, 1, v4
    v_xor_b32 v4, v4, v5
    v_lshl_add_u32 v4, v4, 4, v13
    v_lshl_add_u32 v4, v{r_}, 7, v4
    s_add_u32 s82, s82, {LDS_WD}
    v_add_u32 v4, s82, v4
    s_lshl_b32 s81, s86, 3
    s_add_u32 s80, s80, s81
    s_mul_i32 s80, s80, 20480
    s_lshl_b32 s81, s85, 7
    s_add_u32 s80, s80, s81
    s_add_u32 s80, s80, {W1P:#x}
    v_and_b32 v5, 1, v{vT0}
    v_mul_u32_u24 v5, 20480, v5
    v_lshl_add_u32 v5, v{G}, 8, v5
    v_lshl_add_u32 v5, v{vT1}, 4, v5
    v_add_u32 v5, s80, v5
    v_add_u32 v6, 4096, v5""")


def w1_task(S):
    A = 12
    S.wait_tag("W1R")
    S("s_barrier")
    stamp(S, "w1in")
    S("s_mov_b32 s80, 0x3f803f80\ns_mov_b32 s81, 0x00003f80\ns_mov_b32 s82, 0x3f800000")
    for ks in range(20):
        for hh in range(2):
            S(f"ds_read_b64_tr_b16 {v(WR0+4*ks+2*hh,2)}, v{2 + (ks>>4)} offset:{(ks&15)*4096 + hh*512}")
    for ks in range(20):
        for j in range(4):
            S(f"v_dot2_f32_bf16 v{A+j}, v{WR0+4*ks+j}, s80, {'0' if ks == 0 else 'v%d' % (A+j)}")
    S(f"""v_add_f32 v{A}, v{A}, v{A+1}
    v_add_f32 v{A+2}, v{A+2}, v{A+3}
    v_add_f32 v{A}, v{A}, v{A+2}
    v_mov_b32 v{A+1}, v{A}
    v_permlane16_swap_b32 v{A}, v{A+1}
    v_add_f32 v{A}, v{A}, v{A+1}
    v_mov_b32 v{A+1}, v{A}
    v_permlane32_swap_b32 v{A}, v{A+1}
    v_add_f32 v{A}, v{A}, v{A+1}
    v_mul_f32 v{A}, {f2h(-1/640)}, v{A}""")
    T = 100
    stamp(S, "w1sum")
    for ks in range(20):
        for j in range(4):
            r_ = WR0 + 4 * ks + j
            S(f"v_dot2_f32_bf16 v{T+2*j}, v{r_}, s81, v{A}\nv_dot2_f32_bf16 v{T+2*j+1}, v{r_}, s82, v{A}")
        for j in range(4):
            S(f"v_cvt_pk_bf16_f32 v{WR0+4*ks+j}, v{T+2*j}, v{T+2*j+1}")
        S(f"buffer_store_dwordx4 {v(WR0+4*ks,4)}, v{6 if ks & 4 else 5}, {R(R_WS)}, s{sKS+(ks>>3)} offen offset:{1024*(ks&3)} sc1", tag="W1")


def wd_task(S):
    D, AD = 108, 152
    S.wait_tag("WDR")
    for i in range(10):
        for hh in range(2):
            S(f"ds_read_b64_tr_b16 {v(D+4*i+2*hh,2)}, v4 offset:{i*1024 + hh*512}")
    S(f"""s_lshr_b32 s80, s87, 2
    s_mul_i32 s80, s80, 5120
    s_and_b32 s81, s87, 3
    s_lshl_b32 s81, s81, 8
    s_add_u32 s80, s80, s81
    s_add_u32 s80, s80, {WDP:#x}
    v_and_b32 v11, 15, v{vL}
    v_lshl_add_u32 v11, v11, 4, s80
    s_mov_b32 s81, {54*5120 - 5120}""")
    for i in range(10):
        S(f"""v_add_u32 v12, {4*i}, v10
        v_mul_u32_u24 v13, 52, v12
        v_lshrrev_b32 v13, 8, v13
        v_lshl_add_u32 v12, v12, 10, v11
        v_mad_u32_u24 v{AD+i}, v13, s81, v12""")
    for i in range(10):
        S(f"buffer_store_dwordx4 {v(D+4*i,4)}, v{AD+i}, {R(R_WS)}, 0 offen sc1", tag="WD")
```

```python
import sys
from common import *
import prep, conv, ffn
from prep import vT0, vT1, vL

REF = "interleave_layers__ssm_conv_h3__geglu_ffn__prompt.s.ref"
FTR = """L_end:
s_endpgm
.section .rodata,"a"
.p2align 6
.amdhsa_kernel %s
  .amdhsa_next_free_vgpr 512
  .amdhsa_next_free_sgpr 102
  .amdhsa_accum_offset 256
  .amdhsa_group_segment_fixed_size 0
  .amdhsa_kernarg_size 104
  .amdhsa_user_sgpr_count 2
  .amdhsa_user_sgpr_kernarg_segment_ptr 1
  .amdhsa_system_sgpr_workgroup_id_x 1
.end_amdhsa_kernel
""" % KN


def header():
    out = []
    for line in open(REF):
        if line.startswith("; @launch"):
            line = "; @launch grid=(256,1,1) block=(256,1,1) lds=163840\n"
        out.append(line)
        if line.startswith(KN + ":"):
            break
    return "".join(out)


def stop_at(S, name):
    if Cfg.stop == name:
        S.drain()
        S("s_waitcnt vmcnt(0) lgkmcnt(0)")
        ts_flush(S, 212)
        S("s_branch L_end")


def sync_signal(S, sline):
    S("s_barrier")
    signal(S, sline, vT0, vT1)


H_AT = 3
G = dict(nap=0, nap2=0, qzpoll=-70, qz0=-30, wd_step=5.5, wd0=0, ys=2, x1sig=125, w1poll=128, w1chk=170, qz1=150, xpoll=205)
YQ = 124928


def new(f, *a, **k):
    s = Stream()
    f(s, *a, **k)
    return s


def conv_path(S, ring):
    later = prep.kv_addr(S, conv.UB, conv.UCH)
    prep.kv_loads(S)
    later(S)
    conv.conv_addr(S)
    ffn.w_setup(S, 138)
    prep.wd_dma(S)
    stamp(S, "issued")

    def mid(S, tt):
        if tt == H_AT:
            conv.h_loads(S)
            conv.d_load(S)
    prep.kv_compute(S, mid)
    prep.wd_task(S)
    stamp(S, "kvdone")
    ts_move(S, conv.cTS)
    conv.h_build(S)
    conv.u_srd(S)
    stamp(S, "hb")
    S.wait_tag("U")
    prep.ready_check(S)
    EP, PT, PL, SEL = conv.EP, conv.cPT, conv.cPL, conv.cSEL
    S(f"""s_lshr_b32 s81, s2, 5
    s_lshl_b32 s81, s81, 4
    s_bfe_u32 s82, s2, 0x20003
    s_lshl_b32 s80, s{sW}, 2
    s_add_u32 s80, s80, s81
    s_add_u32 s80, s80, s82
    s_lshl_b32 s80, s80, 7""")
    signal_w(S, 80, SEL, EP + 16)
    stamp(S, "Uarr")
    S(f"""s_lshl_b32 s82, s82, 2
    s_add_u32 s81, s81, s82
    s_lshl_b32 s81, s81, 7""")
    poll_issue(S, EP + 18, PL, 81)
    poll_check(S, EP + 18, 8, 0xf, G['nap'])
    stamp(S, "Upoll")
    all_issue(S, EP + 20)
    conv.u_dma(S)
    all_check(S, EP + 20, G['nap'])
    stamp(S, "Wpoll")
    for q in range(G["wd0"]):
        ffn.wd_load1(S, q)
    fs = conv.FragSched(27, 24)
    M = Stream()
    M.wait_tag("U2")
    stamp(M, "Udma")
    fs.emit(M, 0, fs.n0 - 30, fence=fs.n0)
    M.wait_tag("U0")
    fs.emit(M, fs.n0 - 30, fs.n0)
    stamp(M, "conv0")
    fs.emit(M, fs.n0, len(fs.seq))
    n0, n = fs.n0, len(fs.seq)
    ev = []

    def ep0(s):
        conv.y_stage(s, 0)
        s.wait_ds()
        s("s_barrier")
        conv.x1_out(s, 0)
        for r_ in (conv.vYW0, conv.vYW1, conv.vTR):
            s(f"v_add_u32 v{r_}, {YQ}, v{r_}")

    def sig0(s):
        conv.x1_line(s, 0, 80)
        s.wait_tag("X1")
        signal_w(s, 80, SEL, PT)
        stamp(s, "x1_0")

    def w1poll(s):
        s(f"s_mov_b32 s80, {CNT + L_W1*128}")
        poll_issue(s, PT, PL, 80)

    def qzpoll(s):
        s(f"s_mov_b32 s80, {CNT + L_QZ*128}")
        poll_issue(s, PT, PL, 80)

    def qz0(s):
        poll_check(s, PT, 7, 0x3f)
        stamp(s, "QZchk")
        conv.qz_loads(s, 0)
    ev.append((n0 + G["qzpoll"], 2, new(qzpoll)))
    ev.append((n0 + G["qz0"], 2, new(qz0)))
    ev.append((n0 + G["ys"], 3, new(ep0)))
    ev.append((n0 + G["x1sig"], 2, new(sig0)))
    ev.append((n0 + G["w1poll"], 2, new(w1poll)))
    ev.append((n0 + G["qz1"], 2, new(conv.qz_loads, 1)))
    ev.append((n0 + G["w1chk"], 2, new(poll_check, PT, 9, 0x3f)))
    for i in range(7):
        ev.append((n0 + G["w1chk"] + 3 + 4 * i, 4, new(ffn.w1_dma1, 0, i)))
    ev.append((n0 + G["xpoll"], 2, new(ffn.x_poll, 0, 0, PT, PL)))
    q, pos = G["wd0"], 0.0
    while q < 70 and pos < n - 3:
        ev.append((int(pos), 3, new(ffn.wd_load1, q)))
        q += 1
        pos += G["wd_step"]
        if n0 + G["ys"] <= pos < n0 + G["ys"] + 40:
            pos = n0 + G["ys"] + 40
    ring.wd_next = q
    print("WD loads in conv:", q, "mfma", n0, n)
    ev.sort(key=lambda e: e[0])
    S.extend(weave(M, ev))
    stamp(S, "conv1")
    conv.y_stage(S, 1)
    ffn.setup(S)
    S.wait_tag("W1L0")
    S.wait_ds()
    S("s_barrier")
    ffn.x_check(S, 0, PT)
    stamp(S, "xchk")
    ffn.g1_pre(S, ring)
    ffn.w1_dma(S, 1)
    conv.x1_out(S, 1)
    ffn.setup2(S)
    ts_move(S, ffn.vTS)


def prep_paths(S, nwd):
    Cfg.tsr = 150
    S("L_prep:")
    S.reset()
    prep.clear_counters(S)
    prep.ready_load(S, 99)
    prep.ready_check(S, 99)
    stamp(S, "rdy")
    S(f"""s_sub_u32 s{prep.sP}, s2, 160
    s_cmp_lt_u32 s{prep.sP}, 54
    s_cbranch_scc1 L_wprep
    s_sub_u32 s{prep.sP}, s{prep.sP}, 54""")
    S.push()
    prep.q_dma(S)
    stamp(S, "issued")
    prep.q_task(S)
    stamp(S, "qst")
    S.wait_tag("QZ")
    S(f"""s_mul_i32 s80, s{prep.sP}, 37
    s_lshr_b32 s80, s80, 8
    s_lshl_b32 s80, s80, 7
    s_add_u32 s80, s80, {CNT + L_QZ*128}""")
    sync_signal(S, 80)
    stamp(S, "QZarr")
    S("s_branch L_tail")
    S.drain()
    S.pop()
    S("L_wprep:")
    prep.w_dma(S)
    stamp(S, "issued")
    prep.w1_task(S, lambda s: None)
    stamp(S, "w1st")
    S.wait_tag("W1")
    S(f"s_mul_i32 s88, s{prep.sP}, 57\ns_lshr_b32 s88, s88, 9\ns_lshl_b32 s88, s88, 7")
    S(f"s_add_u32 s80, s88, {CNT + L_W1*128}")
    sync_signal(S, 80)
    stamp(S, "W1arr")
    S("L_tail:")
    S.reset()
    PT, PL = conv.cPT, conv.cPL
    ffn.w_setup(S, 138)
    sel_regs(S, conv.cSEL, PL)
    all_issue(S, 2)
    all_check(S, 2, G['nap2'])
    stamp(S, "WDchk")
    for q in range(nwd):
        ffn.wd_load1(S, q)
    S(f"s_mov_b32 s80, {CNT + L_W1*128}")
    poll_issue(S, PT, PL, 80)
    poll_check(S, PT, 9, 0x3f, G['nap2'])
    stamp(S, "Wpoll")
    ffn.w1_dma(S, 0)
    ffn.w1_dma(S, 1)
    ffn.setup(S)
    ffn.setup2(S)
    ts_move(S, ffn.vTS)
    S.drain()
    S("s_barrier")
    ffn.x_poll(S, 0, 0)
    poll_check(S, ffn.PT, 10, 0xffff, G['nap2'])
    stamp(S, "xchk")
    ffn.g1_pre(S, ffn.Ring())
    S.drain()
    S("s_branch L_g1")


def build():
    S = Stream()
    ring = ffn.Ring()
    prep.prologue(S)
    prep.zero_flags(S)
    stamp(S, "start")
    S(f"s_cmp_ge_u32 s2, 160\ns_cbranch_scc1 L_prep")
    conv_path(S, ring)
    S("L_g1:")
    stop_at(S, "front")
    ffn.ffn(S, ring, stop_at)
    S.drain()
    S("s_endpgm")
    prep_paths(S, ring.wd_next)
    S.extend(COLD)
    text, L = finalize(S)
    return header() + text + FTR, L


if __name__ == "__main__":
    import argparse
    ap = argparse.ArgumentParser()
    ap.add_argument("-o", default="k.s")
    ap.add_argument("--ts", action="store_true")
    ap.add_argument("--stop")
    ap.add_argument("-D", action="append", default=[])
    A = ap.parse_args()
    for d in A.D:
        k_, v_ = d.split("=")
        (G if k_ in G else ffn.P)[k_] = float(v_) if "." in v_ else int(v_)
        assert k_ in G or k_ in ffn.P
    Cfg.ts, Cfg.stop = A.ts, A.stop
    t, L = build()
    open(A.o, "w").write(t)
    import json
    json.dump(TSN, open(A.o + ".json", "w"))
    from collections import Counter
    print(Counter(i.kind for i in L))
```
